```python
import torch

def _softmax(x, axis=-1):
    return torch.softmax(x, dim=axis)
def _gelu(x):
    return torch.nn.functional.gelu(x, approximate="tanh")
def _silu(x):
    return torch.nn.functional.silu(x)
def _sigmoid(x):
    return torch.sigmoid(x)
def _layernorm(x, axis=-1, eps=1e-5):
    m = x.mean(dim=axis, keepdim=True)
    v = x.var(dim=axis, keepdim=True, unbiased=False)
    return (x - m) / torch.sqrt(v + eps)
def _scatter_add(tgt, idx, src, axis=0):
    return tgt.clone().index_add_(axis, idx, src)
def _segment_sum(src, seg, n):
    out = torch.zeros((n,) + src.shape[1:], dtype=src.dtype)
    return out.index_add_(0, seg, src)
def _pad(x, pw):
    flat = tuple(v for pair in reversed(pw) for v in pair)
    return torch.nn.functional.pad(x, flat)

kernel_name = 'standalone__gqa_block_cached__near_ridge'

def setup_inputs():

    _w = (lambda a: (lambda t: t.to(torch.bfloat16) if t.is_floating_point() else t)(torch.as_tensor(a)))
    B, Sq, D = 16, 64, 512
    Hq, Hkv, Sk, Dh = 32, 8, 1024, 128
    assert Hq % Hkv == 0, (Hq, Hkv)
    return {
        "x": _w((lambda *s: torch.randn(*s, dtype=torch.bfloat16) * 0.8)(B, Sq, D)),
        "k_cache": _w((lambda *s: torch.randn(*s, dtype=torch.bfloat16) * 0.8)(B, Hkv, Sk, Dh)),
        "v_cache": _w((lambda *s: torch.randn(*s, dtype=torch.bfloat16) * 0.05)(B, Hkv, Sk, Dh)),
        "wq": _w((lambda *s: torch.randn(*s, dtype=torch.bfloat16) * 0.8)(D, Hq * Dh) * (D ** -0.5)),
        "wo": _w((lambda *s: torch.randn(*s, dtype=torch.bfloat16) * 0.05)(Hq * Dh, D) * ((Hq * Dh) ** -0.5)),
    }

def reference(x, k_cache, v_cache, wq, wo):
    B, Sq, D = x.shape
    Hq, Dh = 32, 128
    Hkv = k_cache.shape[1]
    rep = Hq // Hkv
    q = (lambda x, *d: x.permute(*d))((x @ wq).reshape(B, Sq, Hq, Dh), 0, 2, 1, 3)
    k = (lambda x, n, axis: torch.repeat_interleave(x, n, dim=axis))(k_cache, rep, axis=1)
    v = (lambda x, n, axis: torch.repeat_interleave(x, n, dim=axis))(v_cache, rep, axis=1)
    scores = torch.einsum("bhqd,bhkd->bhqk", q, k) * (Dh ** -0.5)
    p = _softmax(scores, axis=-1)
    o = torch.einsum("bhqk,bhkd->bhqd", p, v)
    return (lambda x, *d: x.permute(*d))(o, 0, 2, 1, 3).reshape(B, Sq, Hq * Dh) @ wo
```

```python
import re

TRANS = ("v_exp_f32", "v_log_f32", "v_rcp_f32", "v_rsq_f32", "v_sqrt_f32", "v_sin_f32", "v_cos_f32")
RMW = ("v_fmac_f32", "v_dot2c_f32_bf16", "v_pk_fmac_f16")


def vregs(op):
    op = op.strip()
    op = op.lstrip("-")
    m = re.fullmatch(r"abs\((.*)\)", op)
    if m:
        op = m.group(1)
    m = re.fullmatch(r"\|(.*)\|", op)
    if m:
        op = m.group(1)
    m = re.fullmatch(r"v(\d+)", op)
    if m:
        return [int(m.group(1))]
    m = re.fullmatch(r"v\[(\d+):(\d+)\]", op)
    if m:
        return list(range(int(m.group(1)), int(m.group(2)) + 1))
    return []


def sregs(op):
    op = op.strip()
    if op == "vcc":
        return ["vcc"]
    if op == "m0":
        return ["m0"]
    if op == "exec":
        return ["exec"]
    m = re.fullmatch(r"s(\d+)", op)
    if m:
        return [int(m.group(1))]
    m = re.fullmatch(r"s\[(\d+):(\d+)\]", op)
    if m:
        return list(range(int(m.group(1)), int(m.group(2)) + 1))
    return []


def vr(base, n=1):
    return f"v{base}" if n == 1 else f"v[{base}:{base + n - 1}]"


def sr(base, n=1):
    return f"s{base}" if n == 1 else f"s[{base}:{base + n - 1}]"


class Rec:
    __slots__ = ("kind", "vr", "vw", "sr", "sw", "srcc", "passes", "states", "mn", "wide_store")


class Asm:
    def __init__(self):
        self.lines = []
        self.hist = []
        self.lgkm = []
        self.vm = []
        self.nid = 0
        self.tags = {}
        self.nops = 0
        self.count = {}

    def raw(self, text):
        self.lines.append(text)

    def comment(self, text):
        self.lines.append("    ; " + text)

    def label(self, name):
        self.lines.append(name + ":")

    def reset_state(self):
        self.lgkm = []
        self.vm = []

    def decode(self, text):
        t = text.split(";")[0].strip()
        mn, _, rest = t.partition(" ")
        ops = [o.strip() for o in re.split(r",(?![^\[]*\])", rest)] if rest else []
        mods = []
        if ops:
            parts = ops[-1].split()
            ops[-1] = parts[0]
            mods = parts[1:]
        r = Rec()
        r.mn = mn
        r.vr, r.vw, r.sr, r.sw, r.srcc = [], [], [], [], []
        r.passes = 0
        r.states = 1
        r.wide_store = False
        allv = lambda os: [x for o in os for x in vregs(o)]
        alls = lambda os: [x for o in os for x in sregs(o)]
        if mn.startswith("v_mfma"):
            r.kind = "mfma"
            r.vw = vregs(ops[0])
            r.vr = allv(ops[1:3])
            r.srcc = vregs(ops[3])
            r.passes = 8 if "32x32x16" in mn else (4 if "16x16x32" in mn else 2)
        elif mn.startswith("v_cmp"):
            r.kind = "valu"
            r.sw = sregs(ops[0])
            r.vr = allv(ops[1:])
            r.sr = alls(ops[1:])
        elif mn.startswith("v_readfirstlane") or mn.startswith("v_readlane"):
            r.kind = "valu"
            r.sw = sregs(ops[0])
            r.vr = allv(ops[1:])
            r.sr = alls(ops[1:])
        elif mn.startswith("v_permlane"):
            r.kind = "valu"
            r.vr = allv(ops)
            r.vw = allv(ops)
        elif mn.startswith("v_"):
            r.kind = "trans" if mn.replace("_e32", "").replace("_e64", "") in TRANS else "valu"
            r.vw = vregs(ops[0])
            r.vr = allv(ops[1:])
            r.sr = alls(ops[1:])
            if mn in RMW:
                r.vr = r.vr + r.vw
            if mn.startswith("v_add_co") or mn.startswith("v_addc_co") or mn.startswith("v_sub_co"):
                r.sw = sregs(ops[1])
        elif mn.startswith("ds_read") or mn.startswith("ds_bpermute"):
            r.kind = "ds_read"
            r.vw = vregs(ops[0])
            r.vr = allv(ops[1:])
        elif mn.startswith("ds_"):
            r.kind = "ds_write"
            r.vr = allv(ops)
        elif mn.startswith("buffer_load") and "lds" in mods:
            r.kind = "dma"
            r.vr = vregs(ops[0])
            r.sr = alls(ops[1:]) + ["m0"]
        elif mn.startswith("buffer_load") or mn.startswith("global_load"):
            r.kind = "vload"
            r.vw = vregs(ops[0])
            r.vr = allv(ops[1:])
            r.sr = alls(ops[1:])
        elif mn.startswith("buffer_store") or mn.startswith("global_store") or mn.startswith("buffer_atomic") or mn.startswith("global_atomic"):
            r.kind = "vstore"
            r.vr = allv(ops)
            r.sr = alls(ops)
            r.wide_store = "x4" in mn or "x3" in mn
            if "atomic" in mn and "sc0" in mods:
                r.vw = vregs(ops[0])
        elif mn in ("buffer_wbl2", "buffer_inv"):
            r.kind = "vstore"
        elif mn == "s_nop":
            r.kind = "nop"
            r.states = int(ops[0], 0) + 1
        elif mn in ("s_waitcnt", "s_barrier", "s_setprio", "s_sleep", "s_endpgm") or mn.startswith("s_cbranch") or mn == "s_branch":
            r.kind = "ctl"
            if mn.startswith("s_cbranch_vcc"):
                r.sr = ["vcc"]
        elif mn.startswith("s_load") or mn.startswith("s_mem"):
            r.kind = "smem"
            r.sw = sregs(ops[0])
            r.sr = alls(ops[1:])
        elif mn.startswith("s_cmp"):
            r.kind = "salu"
            r.sr = alls(ops)
        elif mn.startswith("s_"):
            r.kind = "salu"
            r.sw = sregs(ops[0])
            r.sr = alls(ops[1:])
            if "saveexec" in mn:
                r.sw = r.sw + ["exec"]
        else:
            raise ValueError("unknown instr " + text)
        return r

    @staticmethod
    def need(p, x):
        n = 0
        isv = lambda r: r.kind in ("valu", "trans")
        ov = lambda a, b: bool(set(a) & set(b))
        if isv(p):
            if x.kind == "mfma" and ov(p.vw, x.vr + x.srcc):
                n = max(n, 2)
            if x.mn.startswith("v_permlane") and ov(p.vw, x.vr):
                n = max(n, 2)
            if (x.mn.startswith("v_readfirstlane") or x.mn.startswith("v_readlane")) and ov(p.vw, x.vr):
                n = max(n, 1)
            if "dpp" in x.mn and ov(p.vw, x.vr):
                n = max(n, 2)
            if p.kind == "trans" and x.kind != "trans" and ov(p.vw, x.vr + x.vw):
                n = max(n, 1)
            if p.sw:
                if x.kind in ("dma", "vload", "vstore") and ov(p.sw, x.sr):
                    n = max(n, 5)
                if isv(x) and (ov(p.sw, x.sr) or (x.mn.startswith("v_cndmask") and "vcc" in p.sw) or (x.mn.startswith("v_addc") and "vcc" in p.sw)):
                    n = max(n, 4 if x.mn.startswith("v_readlane") else 2)
                if x.kind in ("salu", "ctl", "smem") and ov(p.sw, x.sr):
                    n = max(n, 4)
        if p.kind == "mfma":
            full = {2: 5, 4: 8, 8: 12}[p.passes]
            part = {2: 4, 4: 6, 8: 10}[p.passes]
            war = {2: 1, 4: 3, 8: 7}[p.passes]
            if x.kind == "mfma":
                if ov(p.vw, x.vr):
                    n = max(n, full)
                if ov(p.vw, x.srcc):
                    if list(p.vw) == list(x.srcc) and p.passes == x.passes:
                        n = max(n, 2 if p.passes == 2 else 0)
                    else:
                        n = max(n, part)
                elif ov(p.vw, x.vw):
                    n = max(n, part)
            else:
                if ov(p.vw, x.vr + x.vw):
                    n = max(n, full)
                if ov(p.srcc, x.vw):
                    n = max(n, war)
        if p.kind == "salu" and "m0" in p.sw and x.kind == "dma":
            n = max(n, 1)
        if p.kind == "salu" and "exec" in p.sw and x.kind == "mfma":
            n = max(n, 1)
        if p.kind == "vstore" and p.wide_store and ov(p.vr, x.vw):
            n = max(n, 2)
        return n

    def _push(self, text, rec):
        self.lines.append("    " + text)
        self.hist.append(rec)
        if len(self.hist) > 40:
            self.hist.pop(0)
        self.count[rec.kind] = self.count.get(rec.kind, 0) + 1

    def _pad(self, x):
        dist = 0
        pad = 0
        for p in reversed(self.hist):
            if dist >= 24:
                break
            pad = max(pad, self.need(p, x) - dist)
            dist += p.states
        while pad > 0:
            k = min(pad, 16)
            self._push(f"s_nop {k - 1}", self.decode(f"s_nop {k - 1}"))
            self.nops += k
            pad -= k

    def wait(self, vm=None, lgkm=None):
        parts = []
        if vm is not None and len(self.vm) > vm:
            assert vm <= 63
            parts.append(f"vmcnt({vm})")
            self.vm = self.vm[len(self.vm) - vm:] if vm else []
        if lgkm is not None and len(self.lgkm) > lgkm:
            assert lgkm <= 15
            parts.append(f"lgkmcnt({lgkm})")
            self.lgkm = self.lgkm[len(self.lgkm) - lgkm:] if lgkm else []
        if parts:
            t = "s_waitcnt " + " ".join(parts)
            self._push(t, self.decode(t))

    def wait_vm_id(self, opid):
        ids = [i for i, _ in self.vm]
        if opid in ids:
            self.wait(vm=len(ids) - 1 - ids.index(opid))

    def outstanding_ds(self):
        return [i for i, _ in self.lgkm]

    def _auto_wait(self, x):
        regs = set(x.vr) | set(x.vw) | set(x.srcc)
        lg = None
        for k, (i, d) in enumerate(self.lgkm):
            if d & regs:
                lg = len(self.lgkm) - 1 - k
        vmw = None
        for k, (i, d) in enumerate(self.vm):
            if d & regs:
                vmw = len(self.vm) - 1 - k
        if lg is not None and lg > 15:
            lg = 15
        self.wait(vm=vmw, lgkm=lg)

    def I(self, text, tag=None, expect=None):
        x = self.decode(text)
        if expect:
            for reg, lab in expect.items():
                assert self.tags.get(reg) == lab, f"tag mismatch at '{text}': v{reg} holds {self.tags.get(reg)} expected {lab}"
        self._auto_wait(x)
        if x.kind in ("ds_read", "ds_write") and len(self.lgkm) >= 15:
            self.wait(lgkm=14)
        if x.kind in ("dma", "vload", "vstore") and len(self.vm) >= 63:
            self.wait(vm=62)
        self._pad(x)
        self._push(text, x)
        for rg in x.vw:
            self.tags[rg] = tag
        opid = None
        if x.kind in ("ds_read", "ds_write"):
            self.nid += 1
            opid = self.nid
            self.lgkm.append((opid, set(x.vw)))
        elif x.kind in ("dma", "vload", "vstore"):
            self.nid += 1
            opid = self.nid
            self.vm.append((opid, set(x.vw)))
        elif x.kind == "smem":
            pass
        return opid

    def text(self):
        return "\n".join(self.lines) + "\n"
```

```python
import sys, math, struct
from asmlib import Asm, vr, sr

NAME = "standalone__gqa_block_cached__near_ridge"
PROFILE = "--profile" in sys.argv
OUT = sys.argv[1] if len(sys.argv) > 1 and not sys.argv[1].startswith("--") else f"cdna_kernels/{NAME}.s"


def opt(name, default):
    for a in sys.argv:
        if a.startswith(f"--{name}="):
            return int(a.split("=")[1])
    return default


SLOT = 17152
NSLOT = 9
WIN = 3 * SLOT
SMALL = NSLOT * SLOT
LDS_BYTES = 163840
D = opt("D", 6)
NF = opt("NF", 12)
THRESH = 0x53800000
FORCE_FB = opt("forcefb", 0)

S_X, S_WQ, S_K, S_V, S_WO, S_WS = 20, 24, 28, 32, 36, 40
sW, sKH, sHH, sQH = 44, 45, 46, 47
sMX, sMV, sMQ, sMO = 48, 49, 50, 51
sPASS = 52
sT0, sT1, sT2, sT3 = 54, 55, 56, 57
sOFF = [60, 61]
sPROF = 64
sTS = 68

vLANE = 1
vX, vWQ, vK, vV, vWO = 2, 3, 4, 5, 6
vL16 = 7
vLS = [8, 9]
vT = [10, 11, 12, 13, 14, 15]
QF = 16
CI = 48
OA = 64
SB = [128, 144]
FB = 160
aKa, aKb, aVa, aVb = 208, 211, 214, 217
aW = 220
aX = 223
QA = 224
XB = 64
vMT = 0
assert FB + 4 * NF <= 208


def f32(x):
    return struct.unpack("<I", struct.pack("<f", x))[0]


class Unit:
    def __init__(self, kind, idx):
        self.kind, self.idx = kind, idx
        self.slot = None
        self.last_id = None
        self.visible = False
        self.reads = []
        self.freed = False

    def __repr__(self):
        return f"{self.kind}{self.idx}"


class Gen:
    def __init__(self):
        self.a = Asm()
        self.free = list(range(NSLOT))
        self.pending = []
        self.units = {}
        self.soff_i = 0
        self.issue_q = []
        self.prof_n = 0

    def unit(self, kind, idx):
        return self.units[(kind, idx)]

    def piece_instrs(self, u, e):
        base = u.slot * SLOT
        k, i = u.kind, u.idx
        if k == "x":
            m0s, lds, so, voff, srd = sMX, base + e * 1040, i * 16384 + e * 1024, vX, S_X
        elif k == "wq":
            m0s, lds, so, voff, srd = sMQ, base + e * 4160, i * 32 * 8192 + e * 8192, vWQ, S_WQ
        elif k == "K":
            m0s, lds, so, voff, srd = sMX, base + e * 1040, i * 8192 + e * 256, vK, S_K
        elif k == "V":
            m0s, lds, so, voff, srd = sMV, base + e * 1088, i * 8192 + e * 256, vV, S_V
        elif k == "wo":
            m0s, lds, so, voff, srd = sMO, base + e * 1088, i * 16384 + e * 2048, vWO, S_WO
        s = sOFF[self.soff_i]
        self.soff_i ^= 1
        return [f"s_add_u32 m0, s{m0s}, {lds}", f"s_mov_b32 s{s}, {so}",
                f"buffer_load_dwordx4 v{voff}, {sr(srd, 4)}, s{s} offen lds"]

    def emit_piece(self, u, e):
        ins = self.piece_instrs(u, e)
        self.a.I(ins[0])
        self.a.I(ins[1])
        u.last_id = self.a.I(ins[2])

    def assign(self, maxn=99):
        n = 0
        while self.free and self.pending and n < maxn:
            u = self.pending.pop(0)
            u.slot = self.free.pop(0)
            self.issue_q.append((u, 0))
            self.issue_q.append((u, 1))
            n += 1

    def drain_issue(self, n=99):
        while self.issue_q and n > 0:
            u, e = self.issue_q.pop(0)
            self.emit_piece(u, e)
            n -= 1

    def barrier(self, need=(), frees=(), keep=()):
        a = self.a
        for u in need:
            assert u.last_id is not None and not any(q[0] is u for q in self.issue_q), f"{u} not issued"
        if need:
            a.wait_vm_id(max(u.last_id for u in need))
        out = set(a.outstanding_ds())
        for u in list(frees) + list(keep):
            if any(r in out for r in u.reads):
                ids = a.outstanding_ds()
                last = max(ids.index(r) for r in u.reads if r in out)
                a.wait(lgkm=len(ids) - 1 - last)
                out = set(a.outstanding_ds())
        a.I("s_barrier")
        for u in need:
            u.visible = True
        for u in frees:
            u.freed = True
            self.free.append(u.slot)
        for u in keep:
            u.freed = True

    def lds_read(self, u, text_fn, off, areg, tag):
        assert u.visible and not u.freed, f"read of {u} vis={u.visible} freed={u.freed}"
        tot = u.slot * SLOT + off
        w = u.slot // 3
        imm = tot - w * WIN
        assert 0 <= imm < 65536
        i = self.a.I(text_fn(areg + w, imm), tag=tag)
        u.reads.append(i)

    def prof(self, name):
        if not PROFILE:
            return
        a = self.a
        n = self.prof_n
        self.prof_n += 1
        a.wait(lgkm=0)
        a.I(f"s_memrealtime {sr(sTS, 2)}")
        a.raw("    s_waitcnt lgkmcnt(0)")
        a.I(f"v_mov_b32 v{vT[5]}, s{sTS}")
        a.I(f"v_mov_b32 v{vT[4]}, {n * 4}")
        a.I(f"buffer_store_dword v{vT[5]}, v{vT[4]}, {sr(sPROF, 4)}, 0 offen")

    def main_kernel(self):
        a = self.a
        I = a.I
        a.raw(f".globl {NAME}_kernel\n.p2align 8\n.type {NAME}_kernel,@function\n{NAME}_kernel:")
        I("s_cmp_ge_u32 s2, 256")
        I("s_cbranch_scc1 L_MAIN_END")
        I("s_load_dwordx16 s[4:19], s[0:1], 0")
        I("s_getpc_b64 s[58:59]")
        a.raw("L_PC:")
        I(f"v_and_b32 v{vLANE}, 63, v0")
        I(f"v_lshrrev_b32 v{vT[0]}, 6, v0")
        I(f"v_lshlrev_b32 v{vT[1]}, 6, v0")
        I(f"v_readfirstlane_b32 s{sW}, v{vT[0]}")
        I(f"v_min_u32 v{vT[1]}, L_RED_END-L_PC, v{vT[1]}")
        I(f"global_load_dword v{vT[2]}, v{vT[1]}, s[58:59]")
        I(f"s_lshr_b32 s{sKH}, s{sW}, 2")
        I(f"s_and_b32 s{sQH}, s{sW}, 1")
        I(f"s_lshr_b32 s{sHH}, s{sW}, 1")
        I(f"s_and_b32 s{sHH}, s{sHH}, 1")
        I(f"s_mul_i32 s{sMX}, s{sW}, 2080")
        I(f"s_lshr_b32 s{sT0}, s{sW}, 1")
        I(f"s_mul_i32 s{sMV}, s{sT0}, 4288")
        I(f"s_mul_i32 s{sT1}, s{sQH}, 2176")
        I(f"s_add_u32 s{sMV}, s{sMV}, s{sT1}")
        I(f"s_lshl_b32 s{sMQ}, s{sT0}, 10")
        I(f"s_mul_i32 s{sT1}, s{sQH}, 8320")
        I(f"s_add_u32 s{sMQ}, s{sMQ}, s{sT1}")
        I(f"s_mul_i32 s{sMO}, s{sW}, 2144")
        I(f"s_mov_b64 {sr(sPASS, 2)}, 0")
        I("s_and_b32 s62, s2, 7")
        I("s_lshr_b32 s63, s2, 3")
        I("s_and_b32 s63, s63, 1")
        I("s_lshr_b32 s3, s2, 4")
        L = vLANE
        t0, t1, t2, t3 = vT[0], vT[1], vT[3], vT[4]
        I(f"v_lshlrev_b32 v{vL16}, 4, v{L}")
        I(f"s_lshl_b32 s{sT1}, s{sW}, 11")
        I(f"v_add_u32 v{vX}, s{sT1}, v{vL16}")
        I(f"v_lshrrev_b32 v{t0}, 5, v{L}")
        I(f"v_lshlrev_b32 v{t0}, 15, v{t0}")
        I(f"v_and_b32 v{t1}, 31, v{L}")
        I(f"v_lshl_add_u32 v{t0}, v{t1}, 4, v{t0}")
        I(f"s_lshl_b32 s{sT1}, s{sT0}, 16")
        I(f"s_lshl_b32 s{sT2}, s{sQH}, 14")
        I(f"s_add_u32 s{sT1}, s{sT1}, s{sT2}")
        I(f"v_add_u32 v{vWQ}, s{sT1}, v{t0}")
        a.raw("    s_waitcnt lgkmcnt(0)")
        def srd(dst, ptr, off_s, size):
            I(f"s_add_u32 s{dst}, s{ptr}, s{off_s}")
            I(f"s_addc_u32 s{dst + 1}, s{ptr + 1}, 0")
            I(f"s_mov_b32 s{dst + 2}, {size}")
            I(f"s_mov_b32 s{dst + 3}, 0x00020000")
        I(f"s_lshl_b32 s{sT1}, s3, 16")
        srd(S_X, 4, sT1, 65536)
        I(f"s_lshl_b32 s{sT1}, s62, 10")
        I(f"s_lshl_b32 s{sT2}, s63, 9")
        I(f"s_add_u32 s{sT1}, s{sT1}, s{sT2}")
        srd(S_WQ, 10, sT1, 511 * 8192 + 512)
        order = [("x", i) for i in range(4)] + [("wq", i) for i in range(16)]
        order += [("K", 0)]
        for t in range(15):
            order += [("K", t + 1), ("V", t)]
        order += [("V", 15)]
        order += [("wo", i) for i in range(16)]
        for k, i in order:
            u = Unit(k, i)
            self.units[(k, i)] = u
            self.pending.append(u)
        self.assign()
        self.drain_issue()
        I(f"s_lshl_b32 s{sT1}, s3, 3")
        I(f"s_add_u32 s{sT1}, s{sT1}, s62")
        I(f"s_lshl_b32 s{sT1}, s{sT1}, 18")
        srd(S_K, 6, sT1, 262144)
        srd(S_V, 8, sT1, 262144)
        I(f"s_lshl_b32 s{sT1}, s62, 19")
        I(f"s_lshl_b32 s{sT2}, s63, 18")
        I(f"s_add_u32 s{sT1}, s{sT1}, s{sT2}")
        srd(S_WO, 12, sT1, 262144)
        I(f"s_lshl_b32 s{sT1}, s3, 4")
        I(f"s_lshl_b32 s{sT2}, s62, 1")
        I(f"s_add_u32 s{sT1}, s{sT1}, s{sT2}")
        I(f"s_add_u32 s{sT1}, s{sT1}, s63")
        I(f"s_lshl_b32 s{sT1}, s{sT1}, 16")
        srd(S_WS, 18, sT1, 65536)
        if PROFILE:
            I(f"s_lshl_b32 s{sT1}, s2, 3")
            I(f"s_add_u32 s{sT1}, s{sT1}, s{sW}")
            I(f"s_lshl_b32 s{sT1}, s{sT1}, 8")
            I(f"s_add_u32 s{sT1}, s{sT1}, 0x2000000")
            srd(sPROF, 18, sT1, 256)
            self.prof("start")
        I(f"v_lshrrev_b32 v{t0}, 5, v{L}")
        I(f"v_bfe_u32 v{t1}, v{L}, 4, 1")
        I(f"v_and_b32 v{t2}, 15, v{L}")
        I(f"v_lshlrev_b32 v{vK}, 17, v{t0}")
        I(f"v_lshl_add_u32 v{vK}, v{t1}, 12, v{vK}")
        I(f"v_lshl_add_u32 v{vK}, v{t2}, 4, v{vK}")
        I(f"s_lshl_b32 s{sT1}, s{sW}, 9")
        I(f"v_add_u32 v{vK}, s{sT1}, v{vK}")
        I(f"v_lshrrev_b32 v{t3}, 4, v{L}")
        I(f"v_lshlrev_b32 v{vV}, 10, v{t3}")
        I(f"v_lshl_add_u32 v{vV}, v{t2}, 4, v{vV}")
        I(f"s_lshl_b32 s{sT1}, s{sKH}, 17")
        I(f"s_lshl_b32 s{sT2}, s{sHH}, 12")
        I(f"s_add_u32 s{sT1}, s{sT1}, s{sT2}")
        I(f"s_lshl_b32 s{sT2}, s{sQH}, 9")
        I(f"s_add_u32 s{sT1}, s{sT1}, s{sT2}")
        I(f"v_add_u32 v{vV}, s{sT1}, v{vV}")
        I(f"v_lshlrev_b32 v{vWO}, 12, v{t3}")
        I(f"v_bfe_u32 v{t3}, v{L}, 3, 1")
        I(f"v_lshl_add_u32 v{vWO}, v{t3}, 10, v{vWO}")
        I(f"v_and_b32 v{t3}, 7, v{L}")
        I(f"v_lshl_add_u32 v{vWO}, v{t3}, 4, v{vWO}")
        I(f"s_lshl_b32 s{sT1}, s{sW}, 7")
        I(f"v_add_u32 v{vWO}, s{sT1}, v{vWO}")
        I(f"v_mul_u32_u24 v{aX}, 1040, v{t2}")
        I(f"v_lshl_add_u32 v{aX}, v{t0}, 4, v{aX}")
        I(f"v_lshl_add_u32 v{aKa}, v{t1}, 8, v{aX}")
        I(f"v_mul_u32_u24 v{t3}, {SLOT}, v{t1}")
        I(f"v_add_u32 v{aX}, v{aX}, v{t3}")
        I(f"s_mul_i32 s{sT1}, s{sQH}, {2 * SLOT}")
        I(f"v_add_u32 v{aX}, s{sT1}, v{aX}")
        I(f"s_mul_i32 s{sT1}, s{sKH}, 640")
        I(f"s_mul_i32 s{sT2}, s{sKH}, 384")
        I(f"s_add_u32 s{sT2}, s{sT2}, 128")
        I(f"v_add_u32 v{aKb}, s{sT2}, v{aKa}")
        I(f"v_add_u32 v{aKa}, s{sT1}, v{aKa}")
        trc = vT[5]
        I(f"v_and_b32 v{t3}, 1, v{L}")
        I(f"v_lshlrev_b32 v{trc}, 4, v{t3}")
        I(f"v_bfe_u32 v{t3}, v{L}, 1, 1")
        I(f"v_lshl_add_u32 v{trc}, v{t3}, 3, v{trc}")
        I(f"v_lshl_add_u32 v{trc}, v{t1}, 5, v{trc}")
        I(f"v_bfe_u32 v{t2}, v{L}, 2, 2")
        I(f"v_mul_u32_u24 v{aVa}, 1088, v{t2}")
        I(f"v_lshl_add_u32 v{aVa}, v{t0}, 8, v{aVa}")
        I(f"v_add_u32 v{aVa}, v{aVa}, v{trc}")
        I(f"s_mul_i32 s{sT1}, s{sKH}, {8576 + 128}")
        I(f"s_mul_i32 s{sT2}, s{sKH}, {8576 - 128}")
        I(f"s_add_u32 s{sT2}, s{sT2}, 128")
        I(f"v_add_u32 v{aVb}, s{sT2}, v{aVa}")
        I(f"v_add_u32 v{aVa}, s{sT1}, v{aVa}")
        I(f"v_mul_u32_u24 v{aW}, 4160, v{t2}")
        I(f"v_lshl_add_u32 v{aW}, v{t0}, 10, v{aW}")
        I(f"v_add_u32 v{aW}, v{aW}, v{trc}")
        I(f"s_lshl_b32 s{sT1}, s{sHH}, 8")
        I(f"s_lshl_b32 s{sT2}, s{sKH}, 7")
        I(f"s_add_u32 s{sT1}, s{sT1}, s{sT2}")
        I(f"v_add_u32 v{aW}, s{sT1}, v{aW}")
        for base in (aKa, aKb, aVa, aVb, aW):
            I(f"v_add_u32 v{base + 1}, {WIN}, v{base}")
            I(f"v_add_u32 v{base + 2}, {2 * WIN}, v{base}")
        aWO0 = vT[2]
        I(f"v_lshrrev_b32 v{t3}, 1, v{t2}")
        I(f"v_mul_u32_u24 v{aWO0}, 1088, v{t3}")
        I(f"v_lshl_add_u32 v{aWO0}, v{t0}, 9, v{aWO0}")
        I(f"v_and_b32 v{t3}, 1, v{t2}")
        I(f"v_lshl_add_u32 v{aWO0}, v{t3}, 7, v{aWO0}")
        I(f"v_add_u32 v{aWO0}, v{aWO0}, v{trc}")
        I(f"v_add_u32 v{aWO0}, s{sMO}, v{aWO0}")
        self.aWO0 = aWO0

        self.phase1()
        self.attention()
        self.phase3()
        a.raw("L_MAIN_END:")
        a.raw("    s_endpgm")
        self.fallback()

    def phase1(self):
        a = self.a
        I = a.I
        U = self.unit
        xs = [U("x", i) for i in range(4)]
        assert [u.slot for u in xs] == [0, 1, 2, 3]
        self.barrier(need=xs + [U("wq", 0)])
        self.prof("x+wq0 landed")

        def xread(s):
            i = I(f"ds_read_b128 {vr(XB + 4 * s, 4)}, v{aX} offset:{32 * s}", tag=("x", s))
            for u in xs:
                u.reads.append(i)

        def wqread(i):
            u = U("wq", i)
            for s2 in range(2):
                for dt2 in range(2):
                    reg = QF + (i % 2) * 16 + (s2 * 2 + dt2) * 4
                    for jj in range(2):
                        self.lds_read(u, lambda ar, imm: f"ds_read_b64_tr_b16 {vr(reg + 2 * jj, 2)}, v{ar} offset:{imm}",
                                      (4 * s2 + jj) * 512 + dt2 * 64, aW, ("wq", i, s2, dt2))

        def mm(i):
            for s2 in range(2):
                for dt2 in range(2):
                    reg = QF + (i % 2) * 16 + (s2 * 2 + dt2) * 4
                    s = 2 * i + s2
                    acc = vr(QA + 16 * dt2, 16)
                    I(f"v_mfma_f32_32x32x16_bf16 {acc}, {vr(reg, 4)}, {vr(XB + 4 * s, 4)}, {acc if s else 0}",
                      expect={reg: ("wq", i, s2, dt2), XB + 4 * s: ("x", s)})
                    self.drain_issue(1)

        self.qx = []
        for i in range(16):
            wqread(i)
            if i < 4:
                for s in range(8 * i, 8 * i + 8):
                    xread(s)
            if i > 0:
                mm(i - 1)
            self.drain_issue()
            if i < 15:
                frees = [U("wq", i)] + (xs if i == 3 else [])
                if i in (13, 14):
                    self.barrier(need=[U("wq", i + 1)], keep=[U("wq", i)])
                    self.qx.append(U("wq", i).slot)
                else:
                    self.barrier(need=[U("wq", i + 1)], frees=frees)
                self.assign()
        mm(15)
        self.prof("qproj done")
        c = math.log2(math.e) / math.sqrt(128.0)
        I(f"s_mov_b32 s{sT0}, {f32(c):#x}")
        I(f"s_cmp_eq_u32 s{sKH}, 0")
        I(f"s_cselect_b32 s{sT1}, {self.qx[0]}, {self.qx[1]}")
        I(f"s_cselect_b32 s{sT2}, {self.qx[1]}, {self.qx[0]}")
        I(f"s_mul_i32 s{sT1}, s{sT1}, {SLOT}")
        I(f"s_mul_i32 s{sT2}, s{sT2}, {SLOT}")
        I(f"s_and_b32 s{sT3}, s{sW}, 3")
        I(f"s_lshl_b32 s{sT3}, s{sT3}, 12")
        I(f"s_add_u32 s{sT1}, s{sT1}, s{sT3}")
        I(f"s_add_u32 s{sT2}, s{sT2}, s{sT3}")
        I(f"v_add_u32 v{vT[0]}, s{sT1}, v{vL16}")
        I(f"v_add_u32 v{vT[1]}, s{sT2}, v{vL16}")
        for f in range(4):
            for j in range(8):
                r = QA + 8 * f + j
                I(f"v_mul_f32 v{r}, s{sT0}, v{r}")
            for j in range(4):
                r = QA + 8 * f + 2 * j
                I(f"v_cvt_pk_bf16_f32 v{QF + 4 * f + j}, v{r}, v{r + 1}", tag=("Q", f))
            I(f"ds_write_b128 v{vT[0]}, {vr(QF + 4 * f, 4)} offset:{1024 * f}")
        a.wait(lgkm=0)
        self.barrier(need=[U("K", 0)], frees=[U("wq", 15)])
        self.assign()
        for f in range(4):
            I(f"ds_read_b128 {vr(QF + 16 + 4 * f, 4)}, v{vT[1]} offset:{1024 * f}", tag=("Q", 4 + f))
        self.drain_issue()
        a.wait(lgkm=0)
        self.fb_units = [u for u in self.units.values() if u.kind in ("K", "V") and u.last_id is not None]
        self.fb_slots = {(u.kind, u.idx): u.slot for u in self.fb_units}

    def kread(self, t, s, fb):
        u = self.unit("K", t)
        reg = FB + 4 * fb
        self.lds_read(u, lambda ar, imm: f"ds_read_b128 {vr(reg, 4)}, v{ar} offset:{imm}",
                      32 * (s & 3), aKa if s < 4 else aKb, ("K", t, s))

    def vread(self, t, ks, j, fb):
        u = self.unit("V", t)
        reg = FB + 4 * fb
        for jj in range(2):
            self.lds_read(u, lambda ar, imm: f"ds_read_b64_tr_b16 {vr(reg + 2 * jj, 2)}, v{ar} offset:{imm}",
                          ks * 4288 + jj * 512 + (j & 1) * 64, aVa if j < 2 else aVb, ("V", t, ks, j))

    def attention(self):
        a = self.a
        I = a.I
        U = self.unit
        a.raw("L_ATTN:")
        a.I("s_nop 7")
        I(f"v_mov_b32 v{vLS[0]}, 0")
        I(f"v_mov_b32 v{vLS[1]}, 0")
        for s in range(8):
            self.kread(0, s, s)
        S0 = SB[0]
        for s in range(8):
            I(f"v_mfma_f32_32x32x16_bf16 {vr(S0, 16)}, {vr(FB + 4 * s, 4)}, {vr(QF + 4 * s, 4)}, {vr(S0, 16) if s else 0}",
              expect={FB + 4 * s: ("K", 0, s), QF + 4 * s: ("Q", s)})
        qxu = []
        for sl in self.qx:
            u = Unit("qx", sl)
            u.slot = sl
            qxu.append(u)
        self.barrier(need=[U("K", 1), U("V", 0)], frees=[U("K", 0)] + qxu)
        self.assign()

        seq = []
        for t in range(16):
            if t < 15:
                seq += [("QK", t + 1, s) for s in range(8)]
            seq += [("PV", t, ks, j) for ks in range(2) for j in range(4)]
        n = len(seq)
        pos_qk0 = {op[1]: g for g, op in enumerate(seq) if op[0] == "QK" and op[2] == 0}
        pos_pv0 = {op[1]: g for g, op in enumerate(seq) if op[0] == "PV" and op[2] == 0 and op[3] == 0}
        fill = {g: [] for g in range(-1, n + 1)}

        def read_for(g):
            op = seq[g]
            if op[0] == "QK":
                self.kread(op[1], op[2], g % NF)
            else:
                self.vread(op[1], op[2], op[3], g % NF)

        def sm_a(t, i):
            S = SB[t % 2]
            def f():
                if t == 0:
                    I(f"v_add_f32 v{S + 2 * i}, v{CI}, v{S + 2 * i}")
                    I(f"v_add_f32 v{S + 2 * i + 1}, v{CI}, v{S + 2 * i + 1}")
                I(f"v_exp_f32 v{S + 2 * i}, v{S + 2 * i}")
                I(f"v_exp_f32 v{S + 2 * i + 1}, v{S + 2 * i + 1}")
            return f

        def sm_b(t, i):
            S = SB[t % 2]
            def f():
                I(f"v_add_f32 v{vLS[0]}, v{vLS[0]}, v{S + 2 * i}")
                I(f"v_add_f32 v{vLS[1]}, v{vLS[1]}, v{S + 2 * i + 1}")
                I(f"v_cvt_pk_bf16_f32 v{S + i}, v{S + 2 * i}, v{S + 2 * i + 1}", tag=("P", t, i))
            return f

        for t in range(16):
            if t == 0:
                for i in range(8):
                    g = i if i < 4 else i + 2
                    fill[g - 1].append(sm_a(t, i))
                    fill[g].append(sm_b(t, i))
            elif t < 15:
                start = pos_qk0[t] + 8 + 2
                for i in range(8):
                    fill[start + 2 * i].append(sm_a(t, i))
                    fill[start + 2 * i + 1].append(sm_b(t, i))
            else:
                start = pos_qk0[t] + 8 + 2
                for i in range(8):
                    fill[start + i].append(sm_a(t, i))
                    fill[start + i + 1].append(sm_b(t, i))
        bar_at = {}
        for t in range(1, 17):
            g_first = pos_pv0[t - 1] + 8
            bar_at[g_first - D] = t
        self.ex_slots = []

        for g in range(D):
            read_for(g)
        self.drain_issue()
        m = vT[0]
        I(f"v_max3_f32 v{m}, v{S0}, v{S0 + 1}, v{S0 + 2}")
        for k in range(3, 15, 2):
            I(f"v_max3_f32 v{m}, v{m}, v{S0 + k}, v{S0 + k + 1}")
        I(f"v_max_f32 v{m}, v{m}, v{S0 + 15}")
        I(f"v_mov_b32 v{vT[1]}, v{m}")
        I(f"v_permlane32_swap_b32 v{m}, v{vT[1]}")
        I(f"v_max_f32 v{m}, v{m}, v{vT[1]}")
        I(f"v_cndmask_b32 v{m}, v{m}, v{vMT}, {sr(sPASS, 2)}")
        for k in range(16):
            I(f"v_sub_f32 v{CI + k}, 0, v{m}")
        for f in fill[-1]:
            f()
        for g, op in enumerate(seq):
            if g in bar_at:
                t = bar_at[g]
                need = [U(k, i) for k, i in (("K", t + 1), ("V", t)) if (k, i) in self.units]
                rel = [U(k, i) for k, i in (("K", t), ("V", t - 2)) if (k, i) in self.units]
                nkeep = {14: 1, 15: 2, 16: 1}.get(t, 0)
                keep = rel[:nkeep]
                self.barrier(need=need, frees=rel[nkeep:], keep=keep)
                self.ex_slots += [u.slot for u in keep]
                self.assign()
            if g + D < n:
                read_for(g + D)
            fb = FB + 4 * (g % NF)
            if op[0] == "QK":
                t, s = op[1], op[2]
                S = SB[t % 2]
                I(f"v_mfma_f32_32x32x16_bf16 {vr(S, 16)}, {vr(fb, 4)}, {vr(QF + 4 * s, 4)}, {vr(S, 16) if s else vr(CI, 16)}",
                  expect={fb: ("K", t, s)})
            else:
                t, ks, j = op[1:]
                S = SB[t % 2]
                acc = vr(OA + 16 * j, 16)
                I(f"v_mfma_f32_32x32x16_bf16 {acc}, {vr(fb, 4)}, {vr(S + 4 * ks, 4)}, {acc if (t or ks) else 0}",
                  expect={fb: ("V", t, ks, j), S + 4 * ks: ("P", t, 4 * ks), S + 4 * ks + 3: ("P", t, 4 * ks + 3)})
            for f in fill[g]:
                f()
            self.drain_issue(1)
        self.drain_issue()
        self.prof("attn done")

        l = vLS[0]
        I(f"v_add_f32 v{l}, v{vLS[0]}, v{vLS[1]}")
        I(f"v_mov_b32 v{vLS[1]}, v{l}")
        I(f"v_permlane32_swap_b32 v{l}, v{vLS[1]}")
        I(f"v_add_f32 v{l}, v{l}, v{vLS[1]}")
        I(f"v_mov_b32 v{vLS[1]}, v{CI}")
        I(f"s_mov_b32 s{sT0}, {THRESH if not FORCE_FB else 0:#x}")
        I(f"v_cmp_nge_f32 vcc, s{sT0}, v{l}")
        I(f"v_cndmask_b32 v{vT[0]}, 0, 1, vcc")
        I(f"s_lshl_b32 s{sT1}, s{sW}, 9")
        I(f"s_add_u32 s{sT1}, s{sT1}, {SMALL}")
        I(f"v_lshlrev_b32 v{vT[1]}, 3, v{vLANE}")
        I(f"v_add_u32 v{vT[3]}, s{sT1}, v{vT[1]}")
        I(f"ds_write_b64 v{vT[3]}, {vr(vLS[0], 2)}")
        I(f"s_xor_b32 s{sT1}, s{sW}, 4")
        I(f"s_lshl_b32 s{sT1}, s{sT1}, 9")
        I(f"s_add_u32 s{sT1}, s{sT1}, {SMALL}")
        I(f"v_add_u32 v{vT[3]}, s{sT1}, v{vT[1]}")
        I(f"s_lshl_b32 s{sT1}, s{sW}, 8")
        I(f"s_add_u32 s{sT1}, s{sT1}, {SMALL + 4096}")
        I(f"v_lshlrev_b32 v{vT[1]}, 2, v{vLANE}")
        I(f"v_add_u32 v{vT[1]}, s{sT1}, v{vT[1]}")
        I(f"ds_write_b32 v{vT[1]}, v{vT[0]}")
        ex = self.ex_slots
        assert len(ex) == 4
        I(f"s_cmp_eq_u32 s{sHH}, 0")
        I(f"s_cselect_b32 s{sT0}, {ex[0]}, {ex[1]}")
        I(f"s_cselect_b32 s{sT1}, {ex[2]}, {ex[3]}")
        I(f"s_mul_i32 s{sT0}, s{sT0}, {SLOT}")
        I(f"s_mul_i32 s{sT1}, s{sT1}, {SLOT}")
        I(f"s_lshl_b32 s{sT2}, s{sQH}, 13")
        I(f"s_add_u32 s{sT0}, s{sT0}, s{sT2}")
        I(f"s_add_u32 s{sT1}, s{sT1}, s{sT2}")
        I(f"s_cmp_eq_u32 s{sKH}, 0")
        I(f"s_cselect_b32 s{sT2}, s{sT0}, s{sT1}")
        I(f"s_cselect_b32 s{sT3}, s{sT1}, s{sT0}")
        I(f"v_add_u32 v{vT[0]}, s{sT2}, v{vL16}")
        I(f"v_add_u32 v{vT[1]}, s{sT3}, v{vL16}")
        for k in range(8):
            I(f"ds_write_b128 v{vT[1]}, {vr(OA + 32 + 4 * k, 4)} offset:{1024 * k}")
        a.wait(lgkm=0)
        self.barrier(frees=[U("V", 15)])
        self.assign()
        I(f"v_lshlrev_b32 v{vT[1]}, 5, v{vLANE}")
        I(f"v_add_u32 v{vT[1]}, {SMALL + 4096}, v{vT[1]}")
        I(f"ds_read_b128 {vr(SB[0], 4)}, v{vT[1]}")
        I(f"ds_read_b128 {vr(SB[0] + 4, 4)}, v{vT[1]} offset:16")
        I(f"ds_read_b64 {vr(vT[4], 2)}, v{vT[3]}")
        for k in range(8):
            I(f"ds_read_b128 {vr(QA + 4 * k, 4)}, v{vT[0]} offset:{1024 * k}")
        self.drain_issue()
        S = SB[0]
        I(f"v_or3_b32 v{S}, v{S}, v{S + 1}, v{S + 2}")
        I(f"v_or3_b32 v{S}, v{S}, v{S + 3}, v{S + 4}")
        I(f"v_or3_b32 v{S}, v{S}, v{S + 5}, v{S + 6}")
        I(f"v_or_b32 v{S}, v{S}, v{S + 7}")
        I(f"v_cmp_ne_u32 vcc, 0, v{S}")
        I(f"s_andn2_b64 vcc, vcc, {sr(sPASS, 2)}")
        I(f"s_cmp_lg_u64 vcc, 0")
        I(f"s_cbranch_scc1 L_FALLBACK")
        lo, co, lp, cp = vLS[0], vLS[1], vT[4], vT[5]
        mn, fo, fp = SB[1], SB[1] + 1, SB[1] + 2
        I(f"v_min_f32 v{mn}, v{co}, v{cp}")
        I(f"v_sub_f32 v{fo}, v{mn}, v{co}")
        I(f"v_sub_f32 v{fp}, v{mn}, v{cp}")
        I(f"v_exp_f32 v{fo}, v{fo}")
        I(f"v_exp_f32 v{fp}, v{fp}")
        I(f"v_mul_f32 v{mn}, v{lo}, v{fo}")
        I(f"v_fmac_f32 v{mn}, v{lp}, v{fp}")
        I(f"v_rcp_f32 v{mn}, v{mn}")
        I(f"v_mul_f32 v{fo}, v{fo}, v{mn}")
        I(f"v_mul_f32 v{fp}, v{fp}, v{mn}")
        for f in range(4):
            for j in range(8):
                r = 8 * f + j
                I(f"v_mul_f32 v{OA + r}, v{OA + r}, v{fo}")
                I(f"v_fmac_f32 v{OA + r}, v{QA + r}, v{fp}")
            for j in range(4):
                r = OA + 8 * f + 2 * j
                I(f"v_cvt_pk_bf16_f32 v{QF + 4 * f + j}, v{r}, v{r + 1}")
        a.wait(lgkm=0)
        for f in range(4):
            I(f"ds_write_b128 v{vT[0]}, {vr(QF + 4 * f, 4)} offset:{1024 * f}")
        I(f"v_mov_b32 v{aW}, v{self.aWO0}")
        I(f"v_add_u32 v{aW + 1}, {WIN}, v{aW}")
        I(f"v_add_u32 v{aW + 2}, {2 * WIN}, v{aW}")
        I(f"v_mov_b32 v{aKa}, v{vL16}")
        I(f"v_add_u32 v{aKa + 1}, {WIN}, v{vL16}")
        I(f"v_add_u32 v{aKa + 2}, {2 * WIN}, v{vL16}")
        a.wait(lgkm=0)
        self.barrier()
        self.prof("exchange done")

    def phase3(self):
        a = self.a
        I = a.I
        U = self.unit
        ex = self.ex_slots
        NB = 4

        def reads(k):
            u = U("wo", k)
            a.wait_vm_id(u.last_id)
            u.visible = True
            hh, kh, i = k >> 3, (k >> 2) & 1, k & 3
            for qt in range(2):
                tot = ex[2 * kh + hh] * SLOT + qt * 8192 + i * 1024
                w = tot // WIN
                I(f"ds_read_b128 {vr(128 + (k % NB) * 8 + 4 * qt, 4)}, v{aKa + w} offset:{tot - w * WIN}", tag=("O", k, qt))
            for nt in range(2):
                reg = FB + (k % NB) * 8 + 4 * nt
                for jj in range(2):
                    self.lds_read(u, lambda ar, imm: f"ds_read_b64_tr_b16 {vr(reg + 2 * jj, 2)}, v{ar} offset:{imm}",
                                  jj * 256 + nt * 64, aW, ("wo", k, nt))

        PD = 2
        for k in range(PD):
            reads(k)
        for k in range(16):
            if k + PD < 16:
                reads(k + PD)
            for nt in range(2):
                for qt in range(2):
                    acc = vr(OA + 16 * (2 * nt + qt), 16)
                    ra = FB + (k % NB) * 8 + 4 * nt
                    rb = 128 + (k % NB) * 8 + 4 * qt
                    I(f"v_mfma_f32_32x32x16_bf16 {acc}, {vr(ra, 4)}, {vr(rb, 4)}, {acc if k else 0}",
                      expect={ra: ("wo", k, nt), rb: ("O", k, qt)})
            u = U("wo", k)
            assert not any(r in a.outstanding_ds() for r in u.reads)
            u.freed = True
            self.free.append(u.slot)
            self.assign()
            self.drain_issue()
        self.prof("oproj done")
        I(f"s_lshl_b32 s{sT0}, s{sW}, 13")
        for tile in range(4):
            for s in range(2):
                dst = QF + (tile * 2 + s) * 4
                for j in range(4):
                    r = OA + 16 * tile + 8 * s + 2 * j
                    I(f"v_cvt_pk_bf16_f32 v{dst + j}, v{r}, v{r + 1}")
                off = tile * 2048 + s * 1024
                if off >= 4096:
                    if off == 4096:
                        I(f"s_add_u32 s{sT0}, s{sT0}, 4096")
                    off -= 4096
                I(f"buffer_store_dwordx4 {vr(dst, 4)}, v{vL16}, {sr(S_WS, 4)}, s{sT0} offen offset:{off}")
        if PROFILE:
            a.wait(vm=0)
            self.prof("end")

    def fallback(self):
        a = self.a
        a.reset_state()
        I = a.I
        a.raw("L_FALLBACK:")
        a.raw("    s_waitcnt vmcnt(0) lgkmcnt(0)")
        I("s_nop 15")
        I("s_barrier")
        for u in self.fb_units:
            u.slot = self.fb_slots[(u.kind, u.idx)]
            self.emit_piece(u, 0)
            self.emit_piece(u, 1)
        t0, t1 = vT[0], vT[1]
        I(f"v_and_b32 v{t0}, 31, v{vLANE}")
        I(f"v_lshlrev_b32 v{t0}, 8, v{t0}")
        I(f"v_lshrrev_b32 v{t1}, 5, v{vLANE}")
        I(f"v_lshl_add_u32 v{t0}, v{t1}, 4, v{t0}")
        I(f"s_mul_i32 s{sT0}, s{sKH}, {131072 + 128}")
        I(f"s_mul_i32 s{sT1}, s{sKH}, {131072 - 128}")
        I(f"s_add_u32 s{sT1}, s{sT1}, 128")
        I(f"v_add_u32 v{t1}, s{sT1}, v{t0}")
        I(f"v_add_u32 v{t0}, s{sT0}, v{t0}")
        I(f"v_mov_b32 v{vMT}, 0xff800000")
        I(f"s_mov_b32 s{sT2}, 0")
        a.raw("L_FB_LOOP:")
        for s in range(8):
            I(f"buffer_load_dwordx4 {vr(FB + 4 * s, 4)}, v{t0 if s < 4 else t1}, {sr(S_K, 4)}, s{sT2} offen offset:{32 * (s & 3)}")
        S = SB[0]
        for s in range(8):
            I(f"v_mfma_f32_32x32x16_bf16 {vr(S, 16)}, {vr(FB + 4 * s, 4)}, {vr(QF + 4 * s, 4)}, {vr(S, 16) if s else 0}")
        for k in range(0, 16, 2):
            I(f"v_max3_f32 v{vMT}, v{vMT}, v{S + k}, v{S + k + 1}")
        I(f"s_add_u32 s{sT2}, s{sT2}, 8192")
        I(f"s_cmp_lt_u32 s{sT2}, 131072")
        I("s_nop 7")
        I("s_cbranch_scc1 L_FB_LOOP")
        I(f"v_mov_b32 v{t1}, v{vMT}")
        I(f"v_permlane32_swap_b32 v{vMT}, v{t1}")
        I(f"v_max_f32 v{vMT}, v{vMT}, v{t1}")
        I(f"s_mov_b64 {sr(sPASS, 2)}, -1")
        a.raw("    s_waitcnt vmcnt(0) lgkmcnt(0)")
        I("s_barrier")
        I("s_branch L_ATTN")

    def reduce_kernel(self):
        a = Asm()
        I = a.I
        a.raw(".globl gqa_reduce_kernel\n.p2align 8\n.type gqa_reduce_kernel,@function\ngqa_reduce_kernel:")
        I("s_cmp_ge_u32 s2, 256")
        I("s_cbranch_scc1 L_RED_END")
        I("s_load_dwordx2 s[4:5], s[0:1], 40")
        I("s_load_dwordx2 s[6:7], s[0:1], 56")
        I("s_lshr_b32 s3, s2, 4")
        I("s_and_b32 s16, s2, 15")
        I("v_lshlrev_b32 v1, 4, v0")
        I("s_lshl_b32 s17, s16, 12")
        I("v_add_u32 v1, s17, v1")
        a.raw("    s_waitcnt lgkmcnt(0)")
        I("s_lshl_b32 s17, s3, 20")
        I("s_add_u32 s8, s6, s17")
        I("s_addc_u32 s9, s7, 0")
        I("s_mov_b32 s10, 0x100000")
        I("s_mov_b32 s11, 0x00020000")
        for j in range(16):
            I(f"s_mov_b32 s{20 + j}, {j * 65536}")
        for j in range(16):
            I(f"buffer_load_dwordx4 {vr(8 + 4 * j, 4)}, v1, s[8:11], s{20 + j} offen")
        I("s_lshl_b32 s17, s3, 16")
        I("s_add_u32 s12, s4, s17")
        I("s_addc_u32 s13, s5, 0")
        I("s_mov_b32 s14, 0x10000")
        I("s_mov_b32 s15, 0x00020000")
        I("v_and_b32 v2, 31, v0")
        I("v_bfe_u32 v3, v0, 7, 1")
        I("v_lshl_add_u32 v2, v3, 5, v2")
        I("v_lshlrev_b32 v2, 10, v2")
        I("v_bfe_u32 v3, v0, 5, 2")
        I("v_lshl_add_u32 v2, v3, 4, v2")
        I("s_lshl_b32 s17, s16, 6")
        I("v_add_u32 v2, s17, v2")
        I("s_mov_b32 s18, 0xffff0000")
        acc = 72
        for j in range(16):
            for k in range(4):
                r = 8 + 4 * j + k
                if j == 0:
                    I(f"v_lshlrev_b32 v{acc + 2 * k}, 16, v{r}")
                    I(f"v_and_b32 v{acc + 2 * k + 1}, s18, v{r}")
                else:
                    I(f"v_lshlrev_b32 v4, 16, v{r}")
                    I(f"v_and_b32 v5, s18, v{r}")
                    I(f"v_add_f32 v{acc + 2 * k}, v{acc + 2 * k}, v4")
                    I(f"v_add_f32 v{acc + 2 * k + 1}, v{acc + 2 * k + 1}, v5")
        for k in range(4):
            I(f"v_cvt_pk_bf16_f32 v{4 + k}, v{acc + 2 * k}, v{acc + 2 * k + 1}")
        I("buffer_store_dwordx4 v[4:7], v2, s[12:15], 0 offen")
        a.raw("L_RED_END:")
        a.raw("    s_endpgm")
        return a.text()


def kd(name, vgpr, sgpr=102):
    return f""".amdhsa_kernel {name}
  .amdhsa_next_free_vgpr {vgpr}
  .amdhsa_next_free_sgpr {sgpr}
  .amdhsa_accum_offset {(vgpr + 3) // 4 * 4}
  .amdhsa_group_segment_fixed_size 0
  .amdhsa_kernarg_size 64
  .amdhsa_user_sgpr_count 2
  .amdhsa_user_sgpr_kernarg_segment_ptr 1
  .amdhsa_system_sgpr_workgroup_id_x 1
.end_amdhsa_kernel
"""


def main():
    g = Gen()
    g.main_kernel()
    body = g.a.text()
    red = g.reduce_kernel()
    hdr = open(f"cdna_kernels/{NAME}.s.ref").read().split("; Override launch")[0]
    s = hdr
    s += f"; @launch kernel={NAME}_kernel grid=(256,1,1) block=(512,1,1) lds={LDS_BYTES}\n"
    s += "; @launch kernel=gqa_reduce_kernel grid=(256,1,1) block=(256,1,1) lds=0\n"
    s += '.amdgcn_target "amdgcn-amd-amdhsa--gfx950"\n.text\n'
    s += body + red
    s += '.section .rodata,"a"\n.p2align 6\n' + kd(f"{NAME}_kernel", 256) + ".p2align 6\n" + kd("gqa_reduce_kernel", 80, 48)
    open(OUT, "w").write(s)
    print("counts", g.a.count, "nop states", g.a.nops, file=sys.stderr)


main()
```

```python
import sys, math, struct
from asmlib import Asm, vr, sr

NAME = "standalone__gqa_block_cached__near_ridge"
PROFILE = "--profile" in sys.argv
OUT = sys.argv[1] if len(sys.argv) > 1 and not sys.argv[1].startswith("--") else f"cdna_kernels/{NAME}.s"


def opt(name, default):
    for a in sys.argv:
        if a.startswith(f"--{name}="):
            return int(a.split("=")[1])
    return default


SLOT = 17152
NSLOT = 9
WIN = 3 * SLOT
SMALL = NSLOT * SLOT
LDS_BYTES = 163840
D = opt("D", 6)
NF = opt("NF", 12)
THRESH = 0x53800000
FORCE_FB = opt("forcefb", 0)
ROT = opt("rot", 1)
SAMET = opt("samet", 0)
sROT = 70
NT = opt("nt", 1)
ABL = opt("abl", 0)

S_X, S_WQ, S_K, S_V, S_WO, S_WS = 20, 24, 28, 32, 36, 40
sW, sKH, sHH, sQH = 44, 45, 46, 47
sMX, sMV, sMQ, sMO = 48, 49, 50, 51
sPASS = 52
sT0, sT1, sT2, sT3 = 54, 55, 56, 57
sOFF = [60, 61]
sPROF = 64
sTS = 68

vLANE = 1
vX, vWQ, vK, vV, vWO = 2, 3, 4, 5, 6
vL16 = 7
vLS = [8, 9]
vT = [10, 11, 12, 13, 14, 15]
QF = 16
CI = 48
OA = 64
SB = [128, 144]
FB = 160
aKa, aKb, aVa, aVb = 208, 211, 214, 217
aW = 220
aX = 223
QA = 224
XB = 64
vMT = 0
assert FB + 4 * NF <= 208


def f32(x):
    return struct.unpack("<I", struct.pack("<f", x))[0]


class Unit:
    def __init__(self, kind, idx):
        self.kind, self.idx = kind, idx
        self.slot = None
        self.last_id = None
        self.visible = False
        self.reads = []
        self.freed = False

    def __repr__(self):
        return f"{self.kind}{self.idx}"


class Gen:
    def __init__(self):
        self.a = Asm()
        self.free = list(range(NSLOT))
        self.pending = []
        self.units = {}
        self.soff_i = 0
        self.issue_q = []
        self.prof_n = 0
        self.inloop = False

    def unit(self, kind, idx):
        return self.units[(kind, idx)]

    def piece_instrs(self, u, e):
        base = u.slot * SLOT
        k, i = u.kind, u.idx
        if k == "x":
            m0s, lds, so, voff, srd = sMX, base + e * 1040, i * 16384 + e * 1024, vX, S_X
        elif k == "wq":
            m0s, lds, so, voff, srd = sMQ, base + e * 4160, i * 32 * 8192 + e * 8192, vWQ, S_WQ
        elif k == "K":
            m0s, lds, so, voff, srd = sMX, base + e * 1040, i * 8192 + e * 256, vK, S_K
        elif k == "V":
            m0s, lds, so, voff, srd = sMV, base + e * 1088, i * 8192 + e * 256, vV, S_V
        elif k == "wo":
            m0s, lds, so, voff, srd = sMO, base + e * 1088, i * 16384 + e * 2048, vWO, S_WO
        s = sOFF[self.soff_i]
        self.soff_i ^= 1
        if k in ("K", "V") and SAMET:
            so = e * 256
        if k in ("K", "V") and ROT:
            return [f"s_add_u32 s{s}, s{sROT}, {so}", f"s_add_u32 m0, s{m0s}, {lds}", f"s_and_b32 s{s}, s{s}, 0x1ffff",
                    f"buffer_load_dwordx4 v{voff}, {sr(srd, 4)}, s{s} offen {'nt ' if NT else ''}lds"]
        return [f"s_add_u32 m0, s{m0s}, {lds}", f"s_mov_b32 s{s}, {so}",
                f"buffer_load_dwordx4 v{voff}, {sr(srd, 4)}, s{s} offen lds"]

    def emit_piece(self, u, e):
        if (ABL & 1) and self.inloop and u.kind in ("K", "V"):
            u.last_id = -1
            return
        ins = self.piece_instrs(u, e)
        for t in ins[:-1]:
            self.a.I(t)
        u.last_id = self.a.I(ins[-1])

    def assign(self, maxn=99):
        n = 0
        while self.free and self.pending and n < maxn:
            u = self.pending.pop(0)
            u.slot = self.free.pop(0)
            self.issue_q.append((u, 0))
            self.issue_q.append((u, 1))
            n += 1

    def drain_issue(self, n=99):
        while self.issue_q and n > 0:
            u, e = self.issue_q.pop(0)
            self.emit_piece(u, e)
            n -= 1

    def barrier(self, need=(), frees=(), keep=()):
        a = self.a
        for u in need:
            assert u.last_id is not None and not any(q[0] is u for q in self.issue_q), f"{u} not issued"
        if need:
            a.wait_vm_id(max(u.last_id for u in need))
        out = set(a.outstanding_ds())
        for u in list(frees) + list(keep):
            if any(r in out for r in u.reads):
                ids = a.outstanding_ds()
                last = max(ids.index(r) for r in u.reads if r in out)
                a.wait(lgkm=len(ids) - 1 - last)
                out = set(a.outstanding_ds())
        if not ((ABL & 2) and self.inloop):
            a.I("s_barrier")
        for u in need:
            u.visible = True
        for u in frees:
            u.freed = True
            self.free.append(u.slot)
        for u in keep:
            u.freed = True

    def lds_read(self, u, text_fn, off, areg, tag):
        assert u.visible and not u.freed, f"read of {u} vis={u.visible} freed={u.freed}"
        tot = u.slot * SLOT + off
        w = u.slot // 3
        imm = tot - w * WIN
        assert 0 <= imm < 65536
        if (ABL & 8) and self.inloop:
            x = self.a.decode(text_fn(areg + w, imm))
            for rg in x.vw:
                self.a.tags[rg] = tag
            return
        i = self.a.I(text_fn(areg + w, imm), tag=tag)
        u.reads.append(i)

    def prof(self, name):
        if not PROFILE:
            return
        a = self.a
        n = self.prof_n
        self.prof_n += 1
        a.wait(lgkm=0)
        a.I(f"s_memrealtime {sr(sTS, 2)}")
        a.I(f"s_memtime {sr(sTS + 4, 2)}")
        a.raw("    s_waitcnt lgkmcnt(0)")
        a.I(f"v_mov_b32 v{vT[5]}, s{sTS}")
        a.I(f"v_mov_b32 v{vT[4]}, {n * 4}")
        a.I(f"buffer_store_dword v{vT[5]}, v{vT[4]}, {sr(sPROF, 4)}, 0 offen")
        a.I(f"v_mov_b32 v{vT[5]}, s{sTS + 4}")
        a.I(f"buffer_store_dword v{vT[5]}, v{vT[4]}, {sr(sPROF, 4)}, 0 offen offset:128")

    def main_kernel(self):
        a = self.a
        I = a.I
        a.raw(f".globl {NAME}_kernel\n.p2align 8\n.type {NAME}_kernel,@function\n{NAME}_kernel:")
        I("s_cmp_ge_u32 s2, 256")
        I("s_cbranch_scc1 L_MAIN_END")
        I("s_load_dwordx16 s[4:19], s[0:1], 0")
        I("s_getpc_b64 s[58:59]")
        a.raw("L_PC:")
        I(f"v_and_b32 v{vLANE}, 63, v0")
        I(f"v_lshrrev_b32 v{vT[0]}, 6, v0")
        I(f"v_lshlrev_b32 v{vT[1]}, 6, v0")
        I(f"v_readfirstlane_b32 s{sW}, v{vT[0]}")
        I(f"v_min_u32 v{vT[1]}, L_RED_END-L_PC, v{vT[1]}")
        I(f"global_load_dword v{vT[2]}, v{vT[1]}, s[58:59]")
        I(f"s_lshr_b32 s{sKH}, s{sW}, 2")
        I(f"s_and_b32 s{sQH}, s{sW}, 1")
        I(f"s_lshr_b32 s{sHH}, s{sW}, 1")
        I(f"s_and_b32 s{sHH}, s{sHH}, 1")
        I(f"s_mul_i32 s{sMX}, s{sW}, 2080")
        I(f"s_lshr_b32 s{sT0}, s{sW}, 1")
        I(f"s_mul_i32 s{sMV}, s{sT0}, 4288")
        I(f"s_mul_i32 s{sT1}, s{sQH}, 2176")
        I(f"s_add_u32 s{sMV}, s{sMV}, s{sT1}")
        I(f"s_lshl_b32 s{sMQ}, s{sT0}, 10")
        I(f"s_mul_i32 s{sT1}, s{sQH}, 8320")
        I(f"s_add_u32 s{sMQ}, s{sMQ}, s{sT1}")
        I(f"s_mul_i32 s{sMO}, s{sW}, 2144")
        I(f"s_mov_b64 {sr(sPASS, 2)}, 0")
        I("s_and_b32 s62, s2, 7")
        I("s_lshr_b32 s63, s2, 3")
        I("s_and_b32 s63, s63, 1")
        I("s_lshr_b32 s3, s2, 4")
        I(f"s_lshl_b32 s{sROT}, s62, 1")
        I(f"s_add_u32 s{sROT}, s{sROT}, s3")
        I(f"s_and_b32 s{sROT}, s{sROT}, 15")
        I(f"s_lshl_b32 s{sROT}, s{sROT}, 13")
        L = vLANE
        t0, t1, t2, t3 = vT[0], vT[1], vT[3], vT[4]
        I(f"v_lshlrev_b32 v{vL16}, 4, v{L}")
        I(f"s_lshl_b32 s{sT1}, s{sW}, 11")
        I(f"v_add_u32 v{vX}, s{sT1}, v{vL16}")
        I(f"v_lshrrev_b32 v{t0}, 5, v{L}")
        I(f"v_lshlrev_b32 v{t0}, 15, v{t0}")
        I(f"v_and_b32 v{t1}, 31, v{L}")
        I(f"v_lshl_add_u32 v{t0}, v{t1}, 4, v{t0}")
        I(f"s_lshl_b32 s{sT1}, s{sT0}, 16")
        I(f"s_lshl_b32 s{sT2}, s{sQH}, 14")
        I(f"s_add_u32 s{sT1}, s{sT1}, s{sT2}")
        I(f"v_add_u32 v{vWQ}, s{sT1}, v{t0}")
        a.raw("    s_waitcnt lgkmcnt(0)")
        def srd(dst, ptr, off_s, size):
            I(f"s_add_u32 s{dst}, s{ptr}, s{off_s}")
            I(f"s_addc_u32 s{dst + 1}, s{ptr + 1}, 0")
            I(f"s_mov_b32 s{dst + 2}, {size}")
            I(f"s_mov_b32 s{dst + 3}, 0x00020000")
        I(f"s_lshl_b32 s{sT1}, s3, 16")
        srd(S_X, 4, sT1, 65536)
        I(f"s_lshl_b32 s{sT1}, s62, 10")
        I(f"s_lshl_b32 s{sT2}, s63, 9")
        I(f"s_add_u32 s{sT1}, s{sT1}, s{sT2}")
        srd(S_WQ, 10, sT1, 511 * 8192 + 512)
        order = [("x", i) for i in range(4)] + [("wq", i) for i in range(16)]
        order += [("K", 0)]
        for t in range(15):
            order += [("K", t + 1), ("V", t)]
        order += [("V", 15)]
        order += [("wo", i) for i in range(16)]
        for k, i in order:
            u = Unit(k, i)
            self.units[(k, i)] = u
            self.pending.append(u)
        self.assign()
        self.drain_issue()
        I(f"s_lshl_b32 s{sT1}, s3, 3")
        I(f"s_add_u32 s{sT1}, s{sT1}, s62")
        I(f"s_lshl_b32 s{sT1}, s{sT1}, 18")
        srd(S_K, 6, sT1, 262144)
        srd(S_V, 8, sT1, 262144)
        I(f"s_lshl_b32 s{sT1}, s62, 19")
        I(f"s_lshl_b32 s{sT2}, s63, 18")
        I(f"s_add_u32 s{sT1}, s{sT1}, s{sT2}")
        srd(S_WO, 12, sT1, 262144)
        I(f"s_lshl_b32 s{sT1}, s3, 4")
        I(f"s_lshl_b32 s{sT2}, s62, 1")
        I(f"s_add_u32 s{sT1}, s{sT1}, s{sT2}")
        I(f"s_add_u32 s{sT1}, s{sT1}, s63")
        I(f"s_lshl_b32 s{sT1}, s{sT1}, 16")
        srd(S_WS, 18, sT1, 65536)
        if PROFILE:
            I(f"s_lshl_b32 s{sT1}, s2, 3")
            I(f"s_add_u32 s{sT1}, s{sT1}, s{sW}")
            I(f"s_lshl_b32 s{sT1}, s{sT1}, 8")
            I(f"s_add_u32 s{sT1}, s{sT1}, 0x2000000")
            srd(sPROF, 18, sT1, 256)
            self.prof("start")
        I(f"v_lshrrev_b32 v{t0}, 5, v{L}")
        I(f"v_bfe_u32 v{t1}, v{L}, 4, 1")
        I(f"v_and_b32 v{t2}, 15, v{L}")
        I(f"v_lshlrev_b32 v{vK}, 17, v{t0}")
        I(f"v_lshl_add_u32 v{vK}, v{t1}, 12, v{vK}")
        I(f"v_lshl_add_u32 v{vK}, v{t2}, 4, v{vK}")
        I(f"s_lshl_b32 s{sT1}, s{sW}, 9")
        I(f"v_add_u32 v{vK}, s{sT1}, v{vK}")
        I(f"v_lshrrev_b32 v{t3}, 4, v{L}")
        I(f"v_lshlrev_b32 v{vV}, 10, v{t3}")
        I(f"v_lshl_add_u32 v{vV}, v{t2}, 4, v{vV}")
        I(f"s_lshl_b32 s{sT1}, s{sKH}, 17")
        I(f"s_lshl_b32 s{sT2}, s{sHH}, 12")
        I(f"s_add_u32 s{sT1}, s{sT1}, s{sT2}")
        I(f"s_lshl_b32 s{sT2}, s{sQH}, 9")
        I(f"s_add_u32 s{sT1}, s{sT1}, s{sT2}")
        I(f"v_add_u32 v{vV}, s{sT1}, v{vV}")
        I(f"v_lshlrev_b32 v{vWO}, 12, v{t3}")
        I(f"v_bfe_u32 v{t3}, v{L}, 3, 1")
        I(f"v_lshl_add_u32 v{vWO}, v{t3}, 10, v{vWO}")
        I(f"v_and_b32 v{t3}, 7, v{L}")
        I(f"v_lshl_add_u32 v{vWO}, v{t3}, 4, v{vWO}")
        I(f"s_lshl_b32 s{sT1}, s{sW}, 7")
        I(f"v_add_u32 v{vWO}, s{sT1}, v{vWO}")
        I(f"v_mul_u32_u24 v{aX}, 1040, v{t2}")
        I(f"v_lshl_add_u32 v{aX}, v{t0}, 4, v{aX}")
        I(f"v_lshl_add_u32 v{aKa}, v{t1}, 8, v{aX}")
        I(f"v_mul_u32_u24 v{t3}, {SLOT}, v{t1}")
        I(f"v_add_u32 v{aX}, v{aX}, v{t3}")
        I(f"s_mul_i32 s{sT1}, s{sQH}, {2 * SLOT}")
        I(f"v_add_u32 v{aX}, s{sT1}, v{aX}")
        I(f"s_mul_i32 s{sT1}, s{sKH}, 640")
        I(f"s_mul_i32 s{sT2}, s{sKH}, 384")
        I(f"s_add_u32 s{sT2}, s{sT2}, 128")
        I(f"v_add_u32 v{aKb}, s{sT2}, v{aKa}")
        I(f"v_add_u32 v{aKa}, s{sT1}, v{aKa}")
        trc = vT[5]
        I(f"v_and_b32 v{t3}, 1, v{L}")
        I(f"v_lshlrev_b32 v{trc}, 4, v{t3}")
        I(f"v_bfe_u32 v{t3}, v{L}, 1, 1")
        I(f"v_lshl_add_u32 v{trc}, v{t3}, 3, v{trc}")
        I(f"v_lshl_add_u32 v{trc}, v{t1}, 5, v{trc}")
        I(f"v_bfe_u32 v{t2}, v{L}, 2, 2")
        I(f"v_mul_u32_u24 v{aVa}, 1088, v{t2}")
        I(f"v_lshl_add_u32 v{aVa}, v{t0}, 8, v{aVa}")
        I(f"v_add_u32 v{aVa}, v{aVa}, v{trc}")
        I(f"s_mul_i32 s{sT1}, s{sKH}, {8576 + 128}")
        I(f"s_mul_i32 s{sT2}, s{sKH}, {8576 - 128}")
        I(f"s_add_u32 s{sT2}, s{sT2}, 128")
        I(f"v_add_u32 v{aVb}, s{sT2}, v{aVa}")
        I(f"v_add_u32 v{aVa}, s{sT1}, v{aVa}")
        I(f"v_mul_u32_u24 v{aW}, 4160, v{t2}")
        I(f"v_lshl_add_u32 v{aW}, v{t0}, 10, v{aW}")
        I(f"v_add_u32 v{aW}, v{aW}, v{trc}")
        I(f"s_lshl_b32 s{sT1}, s{sHH}, 8")
        I(f"s_lshl_b32 s{sT2}, s{sKH}, 7")
        I(f"s_add_u32 s{sT1}, s{sT1}, s{sT2}")
        I(f"v_add_u32 v{aW}, s{sT1}, v{aW}")
        for base in (aKa, aKb, aVa, aVb, aW):
            I(f"v_add_u32 v{base + 1}, {WIN}, v{base}")
            I(f"v_add_u32 v{base + 2}, {2 * WIN}, v{base}")
        aWO0 = vT[2]
        I(f"v_lshrrev_b32 v{t3}, 1, v{t2}")
        I(f"v_mul_u32_u24 v{aWO0}, 1088, v{t3}")
        I(f"v_lshl_add_u32 v{aWO0}, v{t0}, 9, v{aWO0}")
        I(f"v_and_b32 v{t3}, 1, v{t2}")
        I(f"v_lshl_add_u32 v{aWO0}, v{t3}, 7, v{aWO0}")
        I(f"v_add_u32 v{aWO0}, v{aWO0}, v{trc}")
        I(f"v_add_u32 v{aWO0}, s{sMO}, v{aWO0}")
        self.aWO0 = aWO0

        self.phase1()
        self.attention()
        self.phase3()
        a.raw("L_MAIN_END:")
        a.raw("    s_endpgm")
        self.fallback()

    def phase1(self):
        a = self.a
        I = a.I
        U = self.unit
        xs = [U("x", i) for i in range(4)]
        assert [u.slot for u in xs] == [0, 1, 2, 3]
        self.barrier(need=xs + [U("wq", 0)])
        self.prof("x+wq0 landed")

        def xread(s):
            i = I(f"ds_read_b128 {vr(XB + 4 * s, 4)}, v{aX} offset:{32 * s}", tag=("x", s))
            for u in xs:
                u.reads.append(i)

        def wqread(i):
            u = U("wq", i)
            for s2 in range(2):
                for dt2 in range(2):
                    reg = QF + (i % 2) * 16 + (s2 * 2 + dt2) * 4
                    for jj in range(2):
                        self.lds_read(u, lambda ar, imm: f"ds_read_b64_tr_b16 {vr(reg + 2 * jj, 2)}, v{ar} offset:{imm}",
                                      (4 * s2 + jj) * 512 + dt2 * 64, aW, ("wq", i, s2, dt2))

        def mm(i):
            for s2 in range(2):
                for dt2 in range(2):
                    reg = QF + (i % 2) * 16 + (s2 * 2 + dt2) * 4
                    s = 2 * i + s2
                    acc = vr(QA + 16 * dt2, 16)
                    I(f"v_mfma_f32_32x32x16_bf16 {acc}, {vr(reg, 4)}, {vr(XB + 4 * s, 4)}, {acc if s else 0}",
                      expect={reg: ("wq", i, s2, dt2), XB + 4 * s: ("x", s)})
                    self.drain_issue(1)

        self.qx = []
        for i in range(16):
            wqread(i)
            if i < 4:
                for s in range(8 * i, 8 * i + 8):
                    xread(s)
            if i > 0:
                mm(i - 1)
            self.drain_issue()
            if i < 15:
                frees = [U("wq", i)] + (xs if i == 3 else [])
                if i in (13, 14):
                    self.barrier(need=[U("wq", i + 1)], keep=[U("wq", i)])
                    self.qx.append(U("wq", i).slot)
                else:
                    self.barrier(need=[U("wq", i + 1)], frees=frees)
                self.assign()
        mm(15)
        self.prof("qproj done")
        c = math.log2(math.e) / math.sqrt(128.0)
        I(f"s_mov_b32 s{sT0}, {f32(c):#x}")
        I(f"s_cmp_eq_u32 s{sKH}, 0")
        I(f"s_cselect_b32 s{sT1}, {self.qx[0]}, {self.qx[1]}")
        I(f"s_cselect_b32 s{sT2}, {self.qx[1]}, {self.qx[0]}")
        I(f"s_mul_i32 s{sT1}, s{sT1}, {SLOT}")
        I(f"s_mul_i32 s{sT2}, s{sT2}, {SLOT}")
        I(f"s_and_b32 s{sT3}, s{sW}, 3")
        I(f"s_lshl_b32 s{sT3}, s{sT3}, 12")
        I(f"s_add_u32 s{sT1}, s{sT1}, s{sT3}")
        I(f"s_add_u32 s{sT2}, s{sT2}, s{sT3}")
        I(f"v_add_u32 v{vT[0]}, s{sT1}, v{vL16}")
        I(f"v_add_u32 v{vT[1]}, s{sT2}, v{vL16}")
        for f in range(4):
            for j in range(8):
                r = QA + 8 * f + j
                I(f"v_mul_f32 v{r}, s{sT0}, v{r}")
            for j in range(4):
                r = QA + 8 * f + 2 * j
                I(f"v_cvt_pk_bf16_f32 v{QF + 4 * f + j}, v{r}, v{r + 1}", tag=("Q", f))
            I(f"ds_write_b128 v{vT[0]}, {vr(QF + 4 * f, 4)} offset:{1024 * f}")
        a.wait(lgkm=0)
        self.barrier(need=[U("K", 0)], frees=[U("wq", 15)])
        self.assign()
        for f in range(4):
            I(f"ds_read_b128 {vr(QF + 16 + 4 * f, 4)}, v{vT[1]} offset:{1024 * f}", tag=("Q", 4 + f))
        self.drain_issue()
        a.wait(lgkm=0)
        self.fb_units = [u for u in self.units.values() if u.kind in ("K", "V") and u.last_id is not None]
        self.fb_slots = {(u.kind, u.idx): u.slot for u in self.fb_units}

    def kread(self, t, s, fb):
        u = self.unit("K", t)
        reg = FB + 4 * fb
        self.lds_read(u, lambda ar, imm: f"ds_read_b128 {vr(reg, 4)}, v{ar} offset:{imm}",
                      32 * (s & 3), aKa if s < 4 else aKb, ("K", t, s))

    def vread(self, t, ks, j, fb):
        u = self.unit("V", t)
        reg = FB + 4 * fb
        for jj in range(2):
            self.lds_read(u, lambda ar, imm: f"ds_read_b64_tr_b16 {vr(reg + 2 * jj, 2)}, v{ar} offset:{imm}",
                          ks * 4288 + jj * 512 + (j & 1) * 64, aVa if j < 2 else aVb, ("V", t, ks, j))

    def attention(self):
        a = self.a
        I = a.I
        U = self.unit
        a.raw("L_ATTN:")
        a.I("s_nop 7")
        I(f"v_mov_b32 v{vLS[0]}, 0")
        I(f"v_mov_b32 v{vLS[1]}, 0")
        for s in range(8):
            self.kread(0, s, s)
        S0 = SB[0]
        for s in range(8):
            I(f"v_mfma_f32_32x32x16_bf16 {vr(S0, 16)}, {vr(FB + 4 * s, 4)}, {vr(QF + 4 * s, 4)}, {vr(S0, 16) if s else 0}",
              expect={FB + 4 * s: ("K", 0, s), QF + 4 * s: ("Q", s)})
        qxu = []
        for sl in self.qx:
            u = Unit("qx", sl)
            u.slot = sl
            qxu.append(u)
        self.barrier(need=[U("K", 1), U("V", 0)], frees=[U("K", 0)] + qxu)
        self.assign()

        seq = []
        for t in range(16):
            if t < 15:
                seq += [("QK", t + 1, s) for s in range(8)]
            seq += [("PV", t, ks, j) for ks in range(2) for j in range(4)]
        n = len(seq)
        pos_qk0 = {op[1]: g for g, op in enumerate(seq) if op[0] == "QK" and op[2] == 0}
        pos_pv0 = {op[1]: g for g, op in enumerate(seq) if op[0] == "PV" and op[2] == 0 and op[3] == 0}
        fill = {g: [] for g in range(-1, n + 1)}

        def read_for(g):
            op = seq[g]
            if op[0] == "QK":
                self.kread(op[1], op[2], g % NF)
            else:
                self.vread(op[1], op[2], op[3], g % NF)

        def sm_a(t, i):
            S = SB[t % 2]
            def f():
                if ABL & 4:
                    return
                if t == 0:
                    I(f"v_add_f32 v{S + 2 * i}, v{CI}, v{S + 2 * i}")
                    I(f"v_add_f32 v{S + 2 * i + 1}, v{CI}, v{S + 2 * i + 1}")
                I(f"v_exp_f32 v{S + 2 * i}, v{S + 2 * i}")
                I(f"v_exp_f32 v{S + 2 * i + 1}, v{S + 2 * i + 1}")
            return f

        def sm_b(t, i):
            S = SB[t % 2]
            def f():
                if ABL & 4:
                    a.tags[S + i] = ("P", t, i)
                    return
                I(f"v_add_f32 v{vLS[0]}, v{vLS[0]}, v{S + 2 * i}")
                I(f"v_add_f32 v{vLS[1]}, v{vLS[1]}, v{S + 2 * i + 1}")
                I(f"v_cvt_pk_bf16_f32 v{S + i}, v{S + 2 * i}, v{S + 2 * i + 1}", tag=("P", t, i))
            return f

        for t in range(16):
            if t == 0:
                for i in range(8):
                    g = i if i < 4 else i + 2
                    fill[g - 1].append(sm_a(t, i))
                    fill[g].append(sm_b(t, i))
            elif t < 15:
                start = pos_qk0[t] + 8 + 2
                for i in range(8):
                    fill[start + 2 * i].append(sm_a(t, i))
                    fill[start + 2 * i + 1].append(sm_b(t, i))
            else:
                start = pos_qk0[t] + 8 + 2
                for i in range(8):
                    fill[start + i].append(sm_a(t, i))
                    fill[start + i + 1].append(sm_b(t, i))
        bar_at = {}
        for t in range(1, 17):
            g_first = pos_pv0[t - 1] + 8
            bar_at[g_first - D] = t
        self.ex_slots = []

        for g in range(D):
            read_for(g)
        self.drain_issue()
        m = vT[0]
        I(f"v_max3_f32 v{m}, v{S0}, v{S0 + 1}, v{S0 + 2}")
        for k in range(3, 15, 2):
            I(f"v_max3_f32 v{m}, v{m}, v{S0 + k}, v{S0 + k + 1}")
        I(f"v_max_f32 v{m}, v{m}, v{S0 + 15}")
        I(f"v_mov_b32 v{vT[1]}, v{m}")
        I(f"v_permlane32_swap_b32 v{m}, v{vT[1]}")
        I(f"v_max_f32 v{m}, v{m}, v{vT[1]}")
        I(f"v_cndmask_b32 v{m}, v{m}, v{vMT}, {sr(sPASS, 2)}")
        for k in range(16):
            I(f"v_sub_f32 v{CI + k}, 0, v{m}")
        for f in fill[-1]:
            f()
        self.prof("loop start")
        self.inloop = True
        for g, op in enumerate(seq):
            if g in bar_at:
                t = bar_at[g]
                need = [U(k, i) for k, i in (("K", t + 1), ("V", t)) if (k, i) in self.units]
                rel = [U(k, i) for k, i in (("K", t), ("V", t - 2)) if (k, i) in self.units]
                nkeep = {14: 1, 15: 2, 16: 1}.get(t, 0)
                keep = rel[:nkeep]
                self.barrier(need=need, frees=rel[nkeep:], keep=keep)
                self.ex_slots += [u.slot for u in keep]
                self.assign()
            if g + D < n:
                read_for(g + D)
            fb = FB + 4 * (g % NF)
            if op[0] == "QK":
                t, s = op[1], op[2]
                S = SB[t % 2]
                I(f"v_mfma_f32_32x32x16_bf16 {vr(S, 16)}, {vr(fb, 4)}, {vr(QF + 4 * s, 4)}, {vr(S, 16) if s else vr(CI, 16)}",
                  expect={fb: ("K", t, s)})
            else:
                t, ks, j = op[1:]
                S = SB[t % 2]
                acc = vr(OA + 16 * j, 16)
                I(f"v_mfma_f32_32x32x16_bf16 {acc}, {vr(fb, 4)}, {vr(S + 4 * ks, 4)}, {acc if (t or ks) else 0}",
                  expect={fb: ("V", t, ks, j), S + 4 * ks: ("P", t, 4 * ks), S + 4 * ks + 3: ("P", t, 4 * ks + 3)})
            for f in fill[g]:
                f()
            self.drain_issue(1)
        self.drain_issue()
        self.inloop = False
        self.prof("attn done")

        l = vLS[0]
        I(f"v_add_f32 v{l}, v{vLS[0]}, v{vLS[1]}")
        I(f"v_mov_b32 v{vLS[1]}, v{l}")
        I(f"v_permlane32_swap_b32 v{l}, v{vLS[1]}")
        I(f"v_add_f32 v{l}, v{l}, v{vLS[1]}")
        I(f"v_mov_b32 v{vLS[1]}, v{CI}")
        I(f"s_mov_b32 s{sT0}, {THRESH if not FORCE_FB else 0:#x}")
        I(f"v_cmp_nge_f32 vcc, s{sT0}, v{l}")
        I(f"v_cndmask_b32 v{vT[0]}, 0, 1, vcc")
        I(f"s_lshl_b32 s{sT1}, s{sW}, 9")
        I(f"s_add_u32 s{sT1}, s{sT1}, {SMALL}")
        I(f"v_lshlrev_b32 v{vT[1]}, 3, v{vLANE}")
        I(f"v_add_u32 v{vT[3]}, s{sT1}, v{vT[1]}")
        I(f"ds_write_b64 v{vT[3]}, {vr(vLS[0], 2)}")
        I(f"s_xor_b32 s{sT1}, s{sW}, 4")
        I(f"s_lshl_b32 s{sT1}, s{sT1}, 9")
        I(f"s_add_u32 s{sT1}, s{sT1}, {SMALL}")
        I(f"v_add_u32 v{vT[3]}, s{sT1}, v{vT[1]}")
        I(f"s_lshl_b32 s{sT1}, s{sW}, 8")
        I(f"s_add_u32 s{sT1}, s{sT1}, {SMALL + 4096}")
        I(f"v_lshlrev_b32 v{vT[1]}, 2, v{vLANE}")
        I(f"v_add_u32 v{vT[1]}, s{sT1}, v{vT[1]}")
        I(f"ds_write_b32 v{vT[1]}, v{vT[0]}")
        ex = self.ex_slots
        assert len(ex) == 4
        I(f"s_cmp_eq_u32 s{sHH}, 0")
        I(f"s_cselect_b32 s{sT0}, {ex[0]}, {ex[1]}")
        I(f"s_cselect_b32 s{sT1}, {ex[2]}, {ex[3]}")
        I(f"s_mul_i32 s{sT0}, s{sT0}, {SLOT}")
        I(f"s_mul_i32 s{sT1}, s{sT1}, {SLOT}")
        I(f"s_lshl_b32 s{sT2}, s{sQH}, 13")
        I(f"s_add_u32 s{sT0}, s{sT0}, s{sT2}")
        I(f"s_add_u32 s{sT1}, s{sT1}, s{sT2}")
        I(f"s_cmp_eq_u32 s{sKH}, 0")
        I(f"s_cselect_b32 s{sT2}, s{sT0}, s{sT1}")
        I(f"s_cselect_b32 s{sT3}, s{sT1}, s{sT0}")
        I(f"v_add_u32 v{vT[0]}, s{sT2}, v{vL16}")
        I(f"v_add_u32 v{vT[1]}, s{sT3}, v{vL16}")
        for k in range(8):
            I(f"ds_write_b128 v{vT[1]}, {vr(OA + 32 + 4 * k, 4)} offset:{1024 * k}")
        a.wait(lgkm=0)
        self.barrier(frees=[U("V", 15)])
        self.assign()
        I(f"v_lshlrev_b32 v{vT[1]}, 5, v{vLANE}")
        I(f"v_add_u32 v{vT[1]}, {SMALL + 4096}, v{vT[1]}")
        I(f"ds_read_b128 {vr(SB[0], 4)}, v{vT[1]}")
        I(f"ds_read_b128 {vr(SB[0] + 4, 4)}, v{vT[1]} offset:16")
        I(f"ds_read_b64 {vr(vT[4], 2)}, v{vT[3]}")
        for k in range(8):
            I(f"ds_read_b128 {vr(QA + 4 * k, 4)}, v{vT[0]} offset:{1024 * k}")
        self.drain_issue()
        S = SB[0]
        I(f"v_or3_b32 v{S}, v{S}, v{S + 1}, v{S + 2}")
        I(f"v_or3_b32 v{S}, v{S}, v{S + 3}, v{S + 4}")
        I(f"v_or3_b32 v{S}, v{S}, v{S + 5}, v{S + 6}")
        I(f"v_or_b32 v{S}, v{S}, v{S + 7}")
        I(f"v_cmp_ne_u32 vcc, 0, v{S}")
        I(f"s_andn2_b64 vcc, vcc, {sr(sPASS, 2)}")
        I(f"s_cmp_lg_u64 vcc, 0")
        I(f"s_cbranch_scc1 L_FALLBACK")
        lo, co, lp, cp = vLS[0], vLS[1], vT[4], vT[5]
        mn, fo, fp = SB[1], SB[1] + 1, SB[1] + 2
        I(f"v_min_f32 v{mn}, v{co}, v{cp}")
        I(f"v_sub_f32 v{fo}, v{mn}, v{co}")
        I(f"v_sub_f32 v{fp}, v{mn}, v{cp}")
        I(f"v_exp_f32 v{fo}, v{fo}")
        I(f"v_exp_f32 v{fp}, v{fp}")
        I(f"v_mul_f32 v{mn}, v{lo}, v{fo}")
        I(f"v_fmac_f32 v{mn}, v{lp}, v{fp}")
        I(f"v_rcp_f32 v{mn}, v{mn}")
        I(f"v_mul_f32 v{fo}, v{fo}, v{mn}")
        I(f"v_mul_f32 v{fp}, v{fp}, v{mn}")
        for f in range(4):
            for j in range(8):
                r = 8 * f + j
                I(f"v_mul_f32 v{OA + r}, v{OA + r}, v{fo}")
                I(f"v_fmac_f32 v{OA + r}, v{QA + r}, v{fp}")
            for j in range(4):
                r = OA + 8 * f + 2 * j
                I(f"v_cvt_pk_bf16_f32 v{QF + 4 * f + j}, v{r}, v{r + 1}")
        a.wait(lgkm=0)
        for f in range(4):
            I(f"ds_write_b128 v{vT[0]}, {vr(QF + 4 * f, 4)} offset:{1024 * f}")
        I(f"v_mov_b32 v{aW}, v{self.aWO0}")
        I(f"v_add_u32 v{aW + 1}, {WIN}, v{aW}")
        I(f"v_add_u32 v{aW + 2}, {2 * WIN}, v{aW}")
        I(f"v_mov_b32 v{aKa}, v{vL16}")
        I(f"v_add_u32 v{aKa + 1}, {WIN}, v{vL16}")
        I(f"v_add_u32 v{aKa + 2}, {2 * WIN}, v{vL16}")
        a.wait(lgkm=0)
        self.barrier()
        self.prof("exchange done")

    def phase3(self):
        a = self.a
        I = a.I
        U = self.unit
        ex = self.ex_slots
        NB = 4

        def reads(k):
            u = U("wo", k)
            a.wait_vm_id(u.last_id)
            u.visible = True
            hh, kh, i = k >> 3, (k >> 2) & 1, k & 3
            for qt in range(2):
                tot = ex[2 * kh + hh] * SLOT + qt * 8192 + i * 1024
                w = tot // WIN
                I(f"ds_read_b128 {vr(128 + (k % NB) * 8 + 4 * qt, 4)}, v{aKa + w} offset:{tot - w * WIN}", tag=("O", k, qt))
            for nt in range(2):
                reg = FB + (k % NB) * 8 + 4 * nt
                for jj in range(2):
                    self.lds_read(u, lambda ar, imm: f"ds_read_b64_tr_b16 {vr(reg + 2 * jj, 2)}, v{ar} offset:{imm}",
                                  jj * 256 + nt * 64, aW, ("wo", k, nt))

        PD = 2
        for k in range(PD):
            reads(k)
        for k in range(16):
            if k + PD < 16:
                reads(k + PD)
            for nt in range(2):
                for qt in range(2):
                    acc = vr(OA + 16 * (2 * nt + qt), 16)
                    ra = FB + (k % NB) * 8 + 4 * nt
                    rb = 128 + (k % NB) * 8 + 4 * qt
                    I(f"v_mfma_f32_32x32x16_bf16 {acc}, {vr(ra, 4)}, {vr(rb, 4)}, {acc if k else 0}",
                      expect={ra: ("wo", k, nt), rb: ("O", k, qt)})
            u = U("wo", k)
            assert not any(r in a.outstanding_ds() for r in u.reads)
            u.freed = True
            self.free.append(u.slot)
            self.assign()
            self.drain_issue()
        self.prof("oproj done")
        I(f"s_lshl_b32 s{sT0}, s{sW}, 13")
        for tile in range(4):
            for s in range(2):
                dst = QF + (tile * 2 + s) * 4
                for j in range(4):
                    r = OA + 16 * tile + 8 * s + 2 * j
                    I(f"v_cvt_pk_bf16_f32 v{dst + j}, v{r}, v{r + 1}")
                off = tile * 2048 + s * 1024
                if off >= 4096:
                    if off == 4096:
                        I(f"s_add_u32 s{sT0}, s{sT0}, 4096")
                    off -= 4096
                I(f"buffer_store_dwordx4 {vr(dst, 4)}, v{vL16}, {sr(S_WS, 4)}, s{sT0} offen offset:{off}")
        if PROFILE:
            a.wait(vm=0)
            self.prof("end")

    def fallback(self):
        a = self.a
        a.reset_state()
        I = a.I
        a.raw("L_FALLBACK:")
        a.raw("    s_waitcnt vmcnt(0) lgkmcnt(0)")
        I("s_nop 15")
        I("s_barrier")
        for u in self.fb_units:
            u.slot = self.fb_slots[(u.kind, u.idx)]
            self.emit_piece(u, 0)
            self.emit_piece(u, 1)
        t0, t1 = vT[0], vT[1]
        I(f"v_and_b32 v{t0}, 31, v{vLANE}")
        I(f"v_lshlrev_b32 v{t0}, 8, v{t0}")
        I(f"v_lshrrev_b32 v{t1}, 5, v{vLANE}")
        I(f"v_lshl_add_u32 v{t0}, v{t1}, 4, v{t0}")
        I(f"s_mul_i32 s{sT0}, s{sKH}, {131072 + 128}")
        I(f"s_mul_i32 s{sT1}, s{sKH}, {131072 - 128}")
        I(f"s_add_u32 s{sT1}, s{sT1}, 128")
        I(f"v_add_u32 v{t1}, s{sT1}, v{t0}")
        I(f"v_add_u32 v{t0}, s{sT0}, v{t0}")
        I(f"v_mov_b32 v{vMT}, 0xff800000")
        I(f"s_mov_b32 s{sT2}, 0")
        a.raw("L_FB_LOOP:")
        for s in range(8):
            I(f"buffer_load_dwordx4 {vr(FB + 4 * s, 4)}, v{t0 if s < 4 else t1}, {sr(S_K, 4)}, s{sT2} offen offset:{32 * (s & 3)}")
        S = SB[0]
        for s in range(8):
            I(f"v_mfma_f32_32x32x16_bf16 {vr(S, 16)}, {vr(FB + 4 * s, 4)}, {vr(QF + 4 * s, 4)}, {vr(S, 16) if s else 0}")
        for k in range(0, 16, 2):
            I(f"v_max3_f32 v{vMT}, v{vMT}, v{S + k}, v{S + k + 1}")
        I(f"s_add_u32 s{sT2}, s{sT2}, 8192")
        I(f"s_cmp_lt_u32 s{sT2}, 131072")
        I("s_nop 7")
        I("s_cbranch_scc1 L_FB_LOOP")
        I(f"v_mov_b32 v{t1}, v{vMT}")
        I(f"v_permlane32_swap_b32 v{vMT}, v{t1}")
        I(f"v_max_f32 v{vMT}, v{vMT}, v{t1}")
        I(f"s_mov_b64 {sr(sPASS, 2)}, -1")
        a.raw("    s_waitcnt vmcnt(0) lgkmcnt(0)")
        I("s_barrier")
        I("s_branch L_ATTN")

    def reduce_kernel(self):
        a = Asm()
        I = a.I
        a.raw(".globl gqa_reduce_kernel\n.p2align 8\n.type gqa_reduce_kernel,@function\ngqa_reduce_kernel:")
        I("s_cmp_ge_u32 s2, 256")
        I("s_cbranch_scc1 L_RED_END")
        I("s_load_dwordx2 s[4:5], s[0:1], 40")
        I("s_load_dwordx2 s[6:7], s[0:1], 56")
        I("s_lshr_b32 s3, s2, 4")
        I("s_and_b32 s16, s2, 15")
        I("v_lshlrev_b32 v1, 4, v0")
        I("s_lshl_b32 s17, s16, 12")
        I("v_add_u32 v1, s17, v1")
        a.raw("    s_waitcnt lgkmcnt(0)")
        I("s_lshl_b32 s17, s3, 20")
        I("s_add_u32 s8, s6, s17")
        I("s_addc_u32 s9, s7, 0")
        I("s_mov_b32 s10, 0x100000")
        I("s_mov_b32 s11, 0x00020000")
        for j in range(16):
            I(f"s_mov_b32 s{20 + j}, {j * 65536}")
        for j in range(16):
            I(f"buffer_load_dwordx4 {vr(8 + 4 * j, 4)}, v1, s[8:11], s{20 + j} offen")
        I("s_lshl_b32 s17, s3, 16")
        I("s_add_u32 s12, s4, s17")
        I("s_addc_u32 s13, s5, 0")
        I("s_mov_b32 s14, 0x10000")
        I("s_mov_b32 s15, 0x00020000")
        I("v_and_b32 v2, 31, v0")
        I("v_bfe_u32 v3, v0, 7, 1")
        I("v_lshl_add_u32 v2, v3, 5, v2")
        I("v_lshlrev_b32 v2, 10, v2")
        I("v_bfe_u32 v3, v0, 5, 2")
        I("v_lshl_add_u32 v2, v3, 4, v2")
        I("s_lshl_b32 s17, s16, 6")
        I("v_add_u32 v2, s17, v2")
        I("s_mov_b32 s18, 0xffff0000")
        acc = 72
        for j in range(16):
            for k in range(4):
                r = 8 + 4 * j + k
                if j == 0:
                    I(f"v_lshlrev_b32 v{acc + 2 * k}, 16, v{r}")
                    I(f"v_and_b32 v{acc + 2 * k + 1}, s18, v{r}")
                else:
                    I(f"v_lshlrev_b32 v4, 16, v{r}")
                    I(f"v_and_b32 v5, s18, v{r}")
                    I(f"v_add_f32 v{acc + 2 * k}, v{acc + 2 * k}, v4")
                    I(f"v_add_f32 v{acc + 2 * k + 1}, v{acc + 2 * k + 1}, v5")
        for k in range(4):
            I(f"v_cvt_pk_bf16_f32 v{4 + k}, v{acc + 2 * k}, v{acc + 2 * k + 1}")
        I("buffer_store_dwordx4 v[4:7], v2, s[12:15], 0 offen")
        a.raw("L_RED_END:")
        a.raw("    s_endpgm")
        return a.text()


def kd(name, vgpr, sgpr=102):
    return f""".amdhsa_kernel {name}
  .amdhsa_next_free_vgpr {vgpr}
  .amdhsa_next_free_sgpr {sgpr}
  .amdhsa_accum_offset {(vgpr + 3) // 4 * 4}
  .amdhsa_group_segment_fixed_size 0
  .amdhsa_kernarg_size 64
  .amdhsa_user_sgpr_count 2
  .amdhsa_user_sgpr_kernarg_segment_ptr 1
  .amdhsa_system_sgpr_workgroup_id_x 1
.end_amdhsa_kernel
"""


def main():
    g = Gen()
    g.main_kernel()
    body = g.a.text()
    red = g.reduce_kernel()
    hdr = open(f"cdna_kernels/{NAME}.s.ref").read().split("; Override launch")[0]
    s = hdr
    s += f"; @launch kernel={NAME}_kernel grid=(256,1,1) block=(512,1,1) lds={LDS_BYTES}\n"
    s += "; @launch kernel=gqa_reduce_kernel grid=(256,1,1) block=(256,1,1) lds=0\n"
    s += '.amdgcn_target "amdgcn-amd-amdhsa--gfx950"\n.text\n'
    s += body + red
    s += '.section .rodata,"a"\n.p2align 6\n' + kd(f"{NAME}_kernel", 256) + ".p2align 6\n" + kd("gqa_reduce_kernel", 80, 48)
    open(OUT, "w").write(s)
    print("counts", g.a.count, "nop states", g.a.nops, file=sys.stderr)


main()
```

```python
import sys, math, struct
from asmlib import Asm, vr, sr

NAME = "standalone__gqa_block_cached__near_ridge"
PROFILE = "--profile" in sys.argv
OUT = sys.argv[1] if len(sys.argv) > 1 and not sys.argv[1].startswith("--") else f"cdna_kernels/{NAME}.s"


def opt(name, default):
    for a in sys.argv:
        if a.startswith(f"--{name}="):
            return int(a.split("=")[1])
    return default


SLOT = 17152
NSLOT = 9
WIN = 3 * SLOT
SMALL = NSLOT * SLOT
LDS_BYTES = 163840
D = opt("D", 6)
NF = opt("NF", 12)
THRESH = 0x53800000
FORCE_FB = opt("forcefb", 0)
ROT = opt("rot", 1)
SAMET = opt("samet", 0)
sROT = 70
NT = opt("nt", 1)
DBGPROF = opt("dbgprof", 0)
ABL = opt("abl", 0)

S_X, S_WQ, S_K, S_V, S_WO, S_WS = 20, 24, 28, 32, 36, 40
sW, sKH, sHH, sQH = 44, 45, 46, 47
sMX, sMV, sMQ, sMO = 48, 49, 50, 51
sPASS = 52
sT0, sT1, sT2, sT3 = 54, 55, 56, 57
sOFF = [60, 61]
sPROF = 64
sTS = 68

vLANE = 1
vX, vWQ, vK, vV, vWO = 2, 3, 4, 5, 6
vL16 = 7
vLS = [8, 9]
vT = [10, 11, 12, 13, 14, 15]
QF = 16
CI = 48
OA = 64
SB = [128, 144]
FB = 160
aKa, aKb, aVa, aVb = 208, 211, 214, 217
aW = 220
aX = 223
QA = 224
XB = 64
vMT = 0
assert FB + 4 * NF <= 208


def f32(x):
    return struct.unpack("<I", struct.pack("<f", x))[0]


class Unit:
    def __init__(self, kind, idx):
        self.kind, self.idx = kind, idx
        self.slot = None
        self.last_id = None
        self.visible = False
        self.reads = []
        self.freed = False

    def __repr__(self):
        return f"{self.kind}{self.idx}"


class Gen:
    def __init__(self):
        self.a = Asm()
        self.free = list(range(NSLOT))
        self.pending = []
        self.units = {}
        self.soff_i = 0
        self.issue_q = []
        self.prof_n = 0
        self.inloop = False

    def unit(self, kind, idx):
        return self.units[(kind, idx)]

    def piece_instrs(self, u, e):
        base = u.slot * SLOT
        k, i = u.kind, u.idx
        if k == "x":
            m0s, lds, so, voff, srd = sMX, base + e * 1040, i * 16384 + e * 1024, vX, S_X
        elif k == "wq":
            m0s, lds, so, voff, srd = sMQ, base + e * 4160, i * 32 * 8192 + e * 8192, vWQ, S_WQ
        elif k == "K":
            m0s, lds, so, voff, srd = sMX, base + e * 1040, i * 8192 + e * 256, vK, S_K
        elif k == "V":
            m0s, lds, so, voff, srd = sMV, base + e * 1088, i * 8192 + e * 256, vV, S_V
        elif k == "wo":
            m0s, lds, so, voff, srd = sMO, base + e * 1088, i * 16384 + e * 2048, vWO, S_WO
        s = sOFF[self.soff_i]
        self.soff_i ^= 1
        if k in ("K", "V") and SAMET:
            so = e * 256
        if k in ("K", "V") and ROT:
            return [f"s_add_u32 s{s}, s{sROT}, {so}", f"s_add_u32 m0, s{m0s}, {lds}", f"s_and_b32 s{s}, s{s}, 0x1ffff",
                    f"buffer_load_dwordx4 v{voff}, {sr(srd, 4)}, s{s} offen {'nt ' if NT else ''}lds"]
        return [f"s_add_u32 m0, s{m0s}, {lds}", f"s_mov_b32 s{s}, {so}",
                f"buffer_load_dwordx4 v{voff}, {sr(srd, 4)}, s{s} offen lds"]

    def emit_piece(self, u, e):
        if (ABL & 1) and self.inloop and u.kind in ("K", "V"):
            u.last_id = -1
            return
        ins = self.piece_instrs(u, e)
        for t in ins[:-1]:
            self.a.I(t)
        u.last_id = self.a.I(ins[-1])

    def assign(self, maxn=99):
        n = 0
        while self.free and self.pending and n < maxn:
            u = self.pending.pop(0)
            u.slot = self.free.pop(0)
            self.issue_q.append((u, 0))
            self.issue_q.append((u, 1))
            n += 1

    def drain_issue(self, n=99):
        while self.issue_q and n > 0:
            u, e = self.issue_q.pop(0)
            self.emit_piece(u, e)
            n -= 1

    def barrier(self, need=(), frees=(), keep=()):
        a = self.a
        for u in need:
            assert u.last_id is not None and not any(q[0] is u for q in self.issue_q), f"{u} not issued"
        if need:
            a.wait_vm_id(max(u.last_id for u in need))
        out = set(a.outstanding_ds())
        for u in list(frees) + list(keep):
            if any(r in out for r in u.reads):
                ids = a.outstanding_ds()
                last = max(ids.index(r) for r in u.reads if r in out)
                a.wait(lgkm=len(ids) - 1 - last)
                out = set(a.outstanding_ds())
        if not ((ABL & 2) and self.inloop):
            a.I("s_barrier")
        for u in need:
            u.visible = True
        for u in frees:
            u.freed = True
            self.free.append(u.slot)
        for u in keep:
            u.freed = True

    def lds_read(self, u, text_fn, off, areg, tag):
        assert u.visible and not u.freed, f"read of {u} vis={u.visible} freed={u.freed}"
        tot = u.slot * SLOT + off
        w = u.slot // 3
        imm = tot - w * WIN
        assert 0 <= imm < 65536
        if (ABL & 8) and self.inloop:
            x = self.a.decode(text_fn(areg + w, imm))
            for rg in x.vw:
                self.a.tags[rg] = tag
            return
        i = self.a.I(text_fn(areg + w, imm), tag=tag)
        u.reads.append(i)

    def prof(self, name):
        if not PROFILE:
            return
        a = self.a
        n = self.prof_n
        self.prof_n += 1
        a.wait(lgkm=0)
        a.I(f"s_memrealtime {sr(sTS, 2)}")
        a.I(f"s_memtime {sr(sTS + 4, 2)}")
        a.raw("    s_waitcnt lgkmcnt(0)")
        a.I(f"v_mov_b32 v{vT[5]}, s{sTS}")
        a.I(f"v_mov_b32 v{vT[4]}, {n * 4}")
        if DBGPROF:
            a.I(f"s_mov_b64 exec, 1")
            a.I(f"buffer_atomic_umax v{vT[5]}, v{vT[4]}, {sr(sPROF, 4)}, 0 offen")
            a.I(f"v_not_b32 v{vT[5]}, v{vT[5]}")
            a.I(f"buffer_atomic_umax v{vT[5]}, v{vT[4]}, {sr(sPROF, 4)}, 0 offen offset:32")
            a.I(f"s_mov_b64 exec, -1")
            return
        a.I(f"buffer_store_dword v{vT[5]}, v{vT[4]}, {sr(sPROF, 4)}, 0 offen")
        a.I(f"v_mov_b32 v{vT[5]}, s{sTS + 4}")
        a.I(f"buffer_store_dword v{vT[5]}, v{vT[4]}, {sr(sPROF, 4)}, 0 offen offset:128")

    def main_kernel(self):
        a = self.a
        I = a.I
        a.raw(f".globl {NAME}_kernel\n.p2align 8\n.type {NAME}_kernel,@function\n{NAME}_kernel:")
        I("s_cmp_ge_u32 s2, 256")
        I("s_cbranch_scc1 L_MAIN_END")
        I("s_load_dwordx16 s[4:19], s[0:1], 0")
        I("s_getpc_b64 s[58:59]")
        a.raw("L_PC:")
        I(f"v_and_b32 v{vLANE}, 63, v0")
        I(f"v_lshrrev_b32 v{vT[0]}, 6, v0")
        I(f"v_lshlrev_b32 v{vT[1]}, 6, v0")
        I(f"v_readfirstlane_b32 s{sW}, v{vT[0]}")
        I(f"v_min_u32 v{vT[1]}, L_RED_END-L_PC, v{vT[1]}")
        I(f"global_load_dword v{vT[2]}, v{vT[1]}, s[58:59]")
        I(f"s_lshr_b32 s{sKH}, s{sW}, 2")
        I(f"s_and_b32 s{sQH}, s{sW}, 1")
        I(f"s_lshr_b32 s{sHH}, s{sW}, 1")
        I(f"s_and_b32 s{sHH}, s{sHH}, 1")
        I(f"s_mul_i32 s{sMX}, s{sW}, 2080")
        I(f"s_lshr_b32 s{sT0}, s{sW}, 1")
        I(f"s_mul_i32 s{sMV}, s{sT0}, 4288")
        I(f"s_mul_i32 s{sT1}, s{sQH}, 2176")
        I(f"s_add_u32 s{sMV}, s{sMV}, s{sT1}")
        I(f"s_lshl_b32 s{sMQ}, s{sT0}, 10")
        I(f"s_mul_i32 s{sT1}, s{sQH}, 8320")
        I(f"s_add_u32 s{sMQ}, s{sMQ}, s{sT1}")
        I(f"s_mul_i32 s{sMO}, s{sW}, 2144")
        I(f"s_mov_b64 {sr(sPASS, 2)}, 0")
        I("s_and_b32 s62, s2, 7")
        I("s_lshr_b32 s63, s2, 3")
        I("s_and_b32 s63, s63, 1")
        I("s_lshr_b32 s3, s2, 4")
        I(f"s_lshl_b32 s{sROT}, s62, 1")
        I(f"s_add_u32 s{sROT}, s{sROT}, s3")
        I(f"s_and_b32 s{sROT}, s{sROT}, 15")
        I(f"s_lshl_b32 s{sROT}, s{sROT}, 13")
        L = vLANE
        t0, t1, t2, t3 = vT[0], vT[1], vT[3], vT[4]
        I(f"v_lshlrev_b32 v{vL16}, 4, v{L}")
        I(f"s_lshl_b32 s{sT1}, s{sW}, 11")
        I(f"v_add_u32 v{vX}, s{sT1}, v{vL16}")
        I(f"v_lshrrev_b32 v{t0}, 5, v{L}")
        I(f"v_lshlrev_b32 v{t0}, 15, v{t0}")
        I(f"v_and_b32 v{t1}, 31, v{L}")
        I(f"v_lshl_add_u32 v{t0}, v{t1}, 4, v{t0}")
        I(f"s_lshl_b32 s{sT1}, s{sT0}, 16")
        I(f"s_lshl_b32 s{sT2}, s{sQH}, 14")
        I(f"s_add_u32 s{sT1}, s{sT1}, s{sT2}")
        I(f"v_add_u32 v{vWQ}, s{sT1}, v{t0}")
        a.raw("    s_waitcnt lgkmcnt(0)")
        def srd(dst, ptr, off_s, size):
            I(f"s_add_u32 s{dst}, s{ptr}, s{off_s}")
            I(f"s_addc_u32 s{dst + 1}, s{ptr + 1}, 0")
            I(f"s_mov_b32 s{dst + 2}, {size}")
            I(f"s_mov_b32 s{dst + 3}, 0x00020000")
        I(f"s_lshl_b32 s{sT1}, s3, 16")
        srd(S_X, 4, sT1, 65536)
        I(f"s_lshl_b32 s{sT1}, s62, 10")
        I(f"s_lshl_b32 s{sT2}, s63, 9")
        I(f"s_add_u32 s{sT1}, s{sT1}, s{sT2}")
        srd(S_WQ, 10, sT1, 511 * 8192 + 512)
        order = [("x", i) for i in range(4)] + [("wq", i) for i in range(16)]
        order += [("K", 0)]
        for t in range(15):
            order += [("K", t + 1), ("V", t)]
        order += [("V", 15)]
        order += [("wo", i) for i in range(16)]
        for k, i in order:
            u = Unit(k, i)
            self.units[(k, i)] = u
            self.pending.append(u)
        self.assign()
        self.drain_issue()
        I(f"s_lshl_b32 s{sT1}, s3, 3")
        I(f"s_add_u32 s{sT1}, s{sT1}, s62")
        I(f"s_lshl_b32 s{sT1}, s{sT1}, 18")
        srd(S_K, 6, sT1, 262144)
        srd(S_V, 8, sT1, 262144)
        I(f"s_lshl_b32 s{sT1}, s62, 19")
        I(f"s_lshl_b32 s{sT2}, s63, 18")
        I(f"s_add_u32 s{sT1}, s{sT1}, s{sT2}")
        srd(S_WO, 12, sT1, 262144)
        I(f"s_lshl_b32 s{sT1}, s3, 4")
        I(f"s_lshl_b32 s{sT2}, s62, 1")
        I(f"s_add_u32 s{sT1}, s{sT1}, s{sT2}")
        I(f"s_add_u32 s{sT1}, s{sT1}, s63")
        I(f"s_lshl_b32 s{sT1}, s{sT1}, 16")
        srd(S_WS, 18, sT1, 65536)
        if PROFILE:
            I(f"s_lshl_b32 s{sT1}, s2, 3")
            I(f"s_add_u32 s{sT1}, s{sT1}, s{sW}")
            I(f"s_lshl_b32 s{sT1}, s{sT1}, 8")
            I(f"s_add_u32 s{sT1}, s{sT1}, 0x2000000")
            if DBGPROF:
                I(f"s_mov_b32 s{sT1}, 0")
                srd(sPROF, 16, sT1, 256)
            else:
                srd(sPROF, 18, sT1, 256)
            self.prof("start")
        I(f"v_lshrrev_b32 v{t0}, 5, v{L}")
        I(f"v_bfe_u32 v{t1}, v{L}, 4, 1")
        I(f"v_and_b32 v{t2}, 15, v{L}")
        I(f"v_lshlrev_b32 v{vK}, 17, v{t0}")
        I(f"v_lshl_add_u32 v{vK}, v{t1}, 12, v{vK}")
        I(f"v_lshl_add_u32 v{vK}, v{t2}, 4, v{vK}")
        I(f"s_lshl_b32 s{sT1}, s{sW}, 9")
        I(f"v_add_u32 v{vK}, s{sT1}, v{vK}")
        I(f"v_lshrrev_b32 v{t3}, 4, v{L}")
        I(f"v_lshlrev_b32 v{vV}, 10, v{t3}")
        I(f"v_lshl_add_u32 v{vV}, v{t2}, 4, v{vV}")
        I(f"s_lshl_b32 s{sT1}, s{sKH}, 17")
        I(f"s_lshl_b32 s{sT2}, s{sHH}, 12")
        I(f"s_add_u32 s{sT1}, s{sT1}, s{sT2}")
        I(f"s_lshl_b32 s{sT2}, s{sQH}, 9")
        I(f"s_add_u32 s{sT1}, s{sT1}, s{sT2}")
        I(f"v_add_u32 v{vV}, s{sT1}, v{vV}")
        I(f"v_lshlrev_b32 v{vWO}, 12, v{t3}")
        I(f"v_bfe_u32 v{t3}, v{L}, 3, 1")
        I(f"v_lshl_add_u32 v{vWO}, v{t3}, 10, v{vWO}")
        I(f"v_and_b32 v{t3}, 7, v{L}")
        I(f"v_lshl_add_u32 v{vWO}, v{t3}, 4, v{vWO}")
        I(f"s_lshl_b32 s{sT1}, s{sW}, 7")
        I(f"v_add_u32 v{vWO}, s{sT1}, v{vWO}")
        I(f"v_mul_u32_u24 v{aX}, 1040, v{t2}")
        I(f"v_lshl_add_u32 v{aX}, v{t0}, 4, v{aX}")
        I(f"v_lshl_add_u32 v{aKa}, v{t1}, 8, v{aX}")
        I(f"v_mul_u32_u24 v{t3}, {SLOT}, v{t1}")
        I(f"v_add_u32 v{aX}, v{aX}, v{t3}")
        I(f"s_mul_i32 s{sT1}, s{sQH}, {2 * SLOT}")
        I(f"v_add_u32 v{aX}, s{sT1}, v{aX}")
        I(f"s_mul_i32 s{sT1}, s{sKH}, 640")
        I(f"s_mul_i32 s{sT2}, s{sKH}, 384")
        I(f"s_add_u32 s{sT2}, s{sT2}, 128")
        I(f"v_add_u32 v{aKb}, s{sT2}, v{aKa}")
        I(f"v_add_u32 v{aKa}, s{sT1}, v{aKa}")
        trc = vT[5]
        I(f"v_and_b32 v{t3}, 1, v{L}")
        I(f"v_lshlrev_b32 v{trc}, 4, v{t3}")
        I(f"v_bfe_u32 v{t3}, v{L}, 1, 1")
        I(f"v_lshl_add_u32 v{trc}, v{t3}, 3, v{trc}")
        I(f"v_lshl_add_u32 v{trc}, v{t1}, 5, v{trc}")
        I(f"v_bfe_u32 v{t2}, v{L}, 2, 2")
        I(f"v_mul_u32_u24 v{aVa}, 1088, v{t2}")
        I(f"v_lshl_add_u32 v{aVa}, v{t0}, 8, v{aVa}")
        I(f"v_add_u32 v{aVa}, v{aVa}, v{trc}")
        I(f"s_mul_i32 s{sT1}, s{sKH}, {8576 + 128}")
        I(f"s_mul_i32 s{sT2}, s{sKH}, {8576 - 128}")
        I(f"s_add_u32 s{sT2}, s{sT2}, 128")
        I(f"v_add_u32 v{aVb}, s{sT2}, v{aVa}")
        I(f"v_add_u32 v{aVa}, s{sT1}, v{aVa}")
        I(f"v_mul_u32_u24 v{aW}, 4160, v{t2}")
        I(f"v_lshl_add_u32 v{aW}, v{t0}, 10, v{aW}")
        I(f"v_add_u32 v{aW}, v{aW}, v{trc}")
        I(f"s_lshl_b32 s{sT1}, s{sHH}, 8")
        I(f"s_lshl_b32 s{sT2}, s{sKH}, 7")
        I(f"s_add_u32 s{sT1}, s{sT1}, s{sT2}")
        I(f"v_add_u32 v{aW}, s{sT1}, v{aW}")
        for base in (aKa, aKb, aVa, aVb, aW):
            I(f"v_add_u32 v{base + 1}, {WIN}, v{base}")
            I(f"v_add_u32 v{base + 2}, {2 * WIN}, v{base}")
        aWO0 = vT[2]
        I(f"v_lshrrev_b32 v{t3}, 1, v{t2}")
        I(f"v_mul_u32_u24 v{aWO0}, 1088, v{t3}")
        I(f"v_lshl_add_u32 v{aWO0}, v{t0}, 9, v{aWO0}")
        I(f"v_and_b32 v{t3}, 1, v{t2}")
        I(f"v_lshl_add_u32 v{aWO0}, v{t3}, 7, v{aWO0}")
        I(f"v_add_u32 v{aWO0}, v{aWO0}, v{trc}")
        I(f"v_add_u32 v{aWO0}, s{sMO}, v{aWO0}")
        self.aWO0 = aWO0

        self.phase1()
        self.attention()
        self.phase3()
        a.raw("L_MAIN_END:")
        a.raw("    s_endpgm")
        self.fallback()

    def phase1(self):
        a = self.a
        I = a.I
        U = self.unit
        xs = [U("x", i) for i in range(4)]
        assert [u.slot for u in xs] == [0, 1, 2, 3]
        self.barrier(need=xs + [U("wq", 0)])
        self.prof("x+wq0 landed")

        def xread(s):
            i = I(f"ds_read_b128 {vr(XB + 4 * s, 4)}, v{aX} offset:{32 * s}", tag=("x", s))
            for u in xs:
                u.reads.append(i)

        def wqread(i):
            u = U("wq", i)
            for s2 in range(2):
                for dt2 in range(2):
                    reg = QF + (i % 2) * 16 + (s2 * 2 + dt2) * 4
                    for jj in range(2):
                        self.lds_read(u, lambda ar, imm: f"ds_read_b64_tr_b16 {vr(reg + 2 * jj, 2)}, v{ar} offset:{imm}",
                                      (4 * s2 + jj) * 512 + dt2 * 64, aW, ("wq", i, s2, dt2))

        def mm(i):
            for s2 in range(2):
                for dt2 in range(2):
                    reg = QF + (i % 2) * 16 + (s2 * 2 + dt2) * 4
                    s = 2 * i + s2
                    acc = vr(QA + 16 * dt2, 16)
                    I(f"v_mfma_f32_32x32x16_bf16 {acc}, {vr(reg, 4)}, {vr(XB + 4 * s, 4)}, {acc if s else 0}",
                      expect={reg: ("wq", i, s2, dt2), XB + 4 * s: ("x", s)})
                    self.drain_issue(1)

        self.qx = []
        for i in range(16):
            wqread(i)
            if i < 4:
                for s in range(8 * i, 8 * i + 8):
                    xread(s)
            if i > 0:
                mm(i - 1)
            self.drain_issue()
            if i < 15:
                frees = [U("wq", i)] + (xs if i == 3 else [])
                if i in (13, 14):
                    self.barrier(need=[U("wq", i + 1)], keep=[U("wq", i)])
                    self.qx.append(U("wq", i).slot)
                else:
                    self.barrier(need=[U("wq", i + 1)], frees=frees)
                self.assign()
        mm(15)
        self.prof("qproj done")
        c = math.log2(math.e) / math.sqrt(128.0)
        I(f"s_mov_b32 s{sT0}, {f32(c):#x}")
        I(f"s_cmp_eq_u32 s{sKH}, 0")
        I(f"s_cselect_b32 s{sT1}, {self.qx[0]}, {self.qx[1]}")
        I(f"s_cselect_b32 s{sT2}, {self.qx[1]}, {self.qx[0]}")
        I(f"s_mul_i32 s{sT1}, s{sT1}, {SLOT}")
        I(f"s_mul_i32 s{sT2}, s{sT2}, {SLOT}")
        I(f"s_and_b32 s{sT3}, s{sW}, 3")
        I(f"s_lshl_b32 s{sT3}, s{sT3}, 12")
        I(f"s_add_u32 s{sT1}, s{sT1}, s{sT3}")
        I(f"s_add_u32 s{sT2}, s{sT2}, s{sT3}")
        I(f"v_add_u32 v{vT[0]}, s{sT1}, v{vL16}")
        I(f"v_add_u32 v{vT[1]}, s{sT2}, v{vL16}")
        for f in range(4):
            for j in range(8):
                r = QA + 8 * f + j
                I(f"v_mul_f32 v{r}, s{sT0}, v{r}")
            for j in range(4):
                r = QA + 8 * f + 2 * j
                I(f"v_cvt_pk_bf16_f32 v{QF + 4 * f + j}, v{r}, v{r + 1}", tag=("Q", f))
            I(f"ds_write_b128 v{vT[0]}, {vr(QF + 4 * f, 4)} offset:{1024 * f}")
        a.wait(lgkm=0)
        self.barrier(need=[U("K", 0)], frees=[U("wq", 15)])
        self.assign()
        for f in range(4):
            I(f"ds_read_b128 {vr(QF + 16 + 4 * f, 4)}, v{vT[1]} offset:{1024 * f}", tag=("Q", 4 + f))
        self.drain_issue()
        a.wait(lgkm=0)
        self.fb_units = [u for u in self.units.values() if u.kind in ("K", "V") and u.last_id is not None]
        self.fb_slots = {(u.kind, u.idx): u.slot for u in self.fb_units}

    def kread(self, t, s, fb):
        u = self.unit("K", t)
        reg = FB + 4 * fb
        self.lds_read(u, lambda ar, imm: f"ds_read_b128 {vr(reg, 4)}, v{ar} offset:{imm}",
                      32 * (s & 3), aKa if s < 4 else aKb, ("K", t, s))

    def vread(self, t, ks, j, fb):
        u = self.unit("V", t)
        reg = FB + 4 * fb
        for jj in range(2):
            self.lds_read(u, lambda ar, imm: f"ds_read_b64_tr_b16 {vr(reg + 2 * jj, 2)}, v{ar} offset:{imm}",
                          ks * 4288 + jj * 512 + (j & 1) * 64, aVa if j < 2 else aVb, ("V", t, ks, j))

    def attention(self):
        a = self.a
        I = a.I
        U = self.unit
        a.raw("L_ATTN:")
        a.I("s_nop 7")
        I(f"v_mov_b32 v{vLS[0]}, 0")
        I(f"v_mov_b32 v{vLS[1]}, 0")
        for s in range(8):
            self.kread(0, s, s)
        S0 = SB[0]
        for s in range(8):
            I(f"v_mfma_f32_32x32x16_bf16 {vr(S0, 16)}, {vr(FB + 4 * s, 4)}, {vr(QF + 4 * s, 4)}, {vr(S0, 16) if s else 0}",
              expect={FB + 4 * s: ("K", 0, s), QF + 4 * s: ("Q", s)})
        qxu = []
        for sl in self.qx:
            u = Unit("qx", sl)
            u.slot = sl
            qxu.append(u)
        self.barrier(need=[U("K", 1), U("V", 0)], frees=[U("K", 0)] + qxu)
        self.assign()

        seq = []
        for t in range(16):
            if t < 15:
                seq += [("QK", t + 1, s) for s in range(8)]
            seq += [("PV", t, ks, j) for ks in range(2) for j in range(4)]
        n = len(seq)
        pos_qk0 = {op[1]: g for g, op in enumerate(seq) if op[0] == "QK" and op[2] == 0}
        pos_pv0 = {op[1]: g for g, op in enumerate(seq) if op[0] == "PV" and op[2] == 0 and op[3] == 0}
        fill = {g: [] for g in range(-1, n + 1)}

        def read_for(g):
            op = seq[g]
            if op[0] == "QK":
                self.kread(op[1], op[2], g % NF)
            else:
                self.vread(op[1], op[2], op[3], g % NF)

        def sm_a(t, i):
            S = SB[t % 2]
            def f():
                if ABL & 4:
                    return
                if t == 0:
                    I(f"v_add_f32 v{S + 2 * i}, v{CI}, v{S + 2 * i}")
                    I(f"v_add_f32 v{S + 2 * i + 1}, v{CI}, v{S + 2 * i + 1}")
                I(f"v_exp_f32 v{S + 2 * i}, v{S + 2 * i}")
                I(f"v_exp_f32 v{S + 2 * i + 1}, v{S + 2 * i + 1}")
            return f

        def sm_b(t, i):
            S = SB[t % 2]
            def f():
                if ABL & 4:
                    a.tags[S + i] = ("P", t, i)
                    return
                I(f"v_add_f32 v{vLS[0]}, v{vLS[0]}, v{S + 2 * i}")
                I(f"v_add_f32 v{vLS[1]}, v{vLS[1]}, v{S + 2 * i + 1}")
                I(f"v_cvt_pk_bf16_f32 v{S + i}, v{S + 2 * i}, v{S + 2 * i + 1}", tag=("P", t, i))
            return f

        for t in range(16):
            if t == 0:
                for i in range(8):
                    g = i if i < 4 else i + 2
                    fill[g - 1].append(sm_a(t, i))
                    fill[g].append(sm_b(t, i))
            elif t < 15:
                start = pos_qk0[t] + 8 + 2
                for i in range(8):
                    fill[start + 2 * i].append(sm_a(t, i))
                    fill[start + 2 * i + 1].append(sm_b(t, i))
            else:
                start = pos_qk0[t] + 8 + 2
                for i in range(8):
                    fill[start + i].append(sm_a(t, i))
                    fill[start + i + 1].append(sm_b(t, i))
        bar_at = {}
        for t in range(1, 17):
            g_first = pos_pv0[t - 1] + 8
            bar_at[g_first - D] = t
        self.ex_slots = []

        for g in range(D):
            read_for(g)
        self.drain_issue()
        m = vT[0]
        I(f"v_max3_f32 v{m}, v{S0}, v{S0 + 1}, v{S0 + 2}")
        for k in range(3, 15, 2):
            I(f"v_max3_f32 v{m}, v{m}, v{S0 + k}, v{S0 + k + 1}")
        I(f"v_max_f32 v{m}, v{m}, v{S0 + 15}")
        I(f"v_mov_b32 v{vT[1]}, v{m}")
        I(f"v_permlane32_swap_b32 v{m}, v{vT[1]}")
        I(f"v_max_f32 v{m}, v{m}, v{vT[1]}")
        I(f"v_cndmask_b32 v{m}, v{m}, v{vMT}, {sr(sPASS, 2)}")
        for k in range(16):
            I(f"v_sub_f32 v{CI + k}, 0, v{m}")
        for f in fill[-1]:
            f()
        self.prof("loop start")
        self.inloop = True
        for g, op in enumerate(seq):
            if g in bar_at:
                t = bar_at[g]
                need = [U(k, i) for k, i in (("K", t + 1), ("V", t)) if (k, i) in self.units]
                rel = [U(k, i) for k, i in (("K", t), ("V", t - 2)) if (k, i) in self.units]
                nkeep = {14: 1, 15: 2, 16: 1}.get(t, 0)
                keep = rel[:nkeep]
                self.barrier(need=need, frees=rel[nkeep:], keep=keep)
                self.ex_slots += [u.slot for u in keep]
                self.assign()
            if g + D < n:
                read_for(g + D)
            fb = FB + 4 * (g % NF)
            if op[0] == "QK":
                t, s = op[1], op[2]
                S = SB[t % 2]
                I(f"v_mfma_f32_32x32x16_bf16 {vr(S, 16)}, {vr(fb, 4)}, {vr(QF + 4 * s, 4)}, {vr(S, 16) if s else vr(CI, 16)}",
                  expect={fb: ("K", t, s)})
            else:
                t, ks, j = op[1:]
                S = SB[t % 2]
                acc = vr(OA + 16 * j, 16)
                I(f"v_mfma_f32_32x32x16_bf16 {acc}, {vr(fb, 4)}, {vr(S + 4 * ks, 4)}, {acc if (t or ks) else 0}",
                  expect={fb: ("V", t, ks, j), S + 4 * ks: ("P", t, 4 * ks), S + 4 * ks + 3: ("P", t, 4 * ks + 3)})
            for f in fill[g]:
                f()
            self.drain_issue(1)
        self.drain_issue()
        self.inloop = False
        self.prof("attn done")

        l = vLS[0]
        I(f"v_add_f32 v{l}, v{vLS[0]}, v{vLS[1]}")
        I(f"v_mov_b32 v{vLS[1]}, v{l}")
        I(f"v_permlane32_swap_b32 v{l}, v{vLS[1]}")
        I(f"v_add_f32 v{l}, v{l}, v{vLS[1]}")
        I(f"v_mov_b32 v{vLS[1]}, v{CI}")
        I(f"s_mov_b32 s{sT0}, {THRESH if not FORCE_FB else 0:#x}")
        I(f"v_cmp_nge_f32 vcc, s{sT0}, v{l}")
        I(f"v_cndmask_b32 v{vT[0]}, 0, 1, vcc")
        I(f"s_lshl_b32 s{sT1}, s{sW}, 9")
        I(f"s_add_u32 s{sT1}, s{sT1}, {SMALL}")
        I(f"v_lshlrev_b32 v{vT[1]}, 3, v{vLANE}")
        I(f"v_add_u32 v{vT[3]}, s{sT1}, v{vT[1]}")
        I(f"ds_write_b64 v{vT[3]}, {vr(vLS[0], 2)}")
        I(f"s_xor_b32 s{sT1}, s{sW}, 4")
        I(f"s_lshl_b32 s{sT1}, s{sT1}, 9")
        I(f"s_add_u32 s{sT1}, s{sT1}, {SMALL}")
        I(f"v_add_u32 v{vT[3]}, s{sT1}, v{vT[1]}")
        I(f"s_lshl_b32 s{sT1}, s{sW}, 8")
        I(f"s_add_u32 s{sT1}, s{sT1}, {SMALL + 4096}")
        I(f"v_lshlrev_b32 v{vT[1]}, 2, v{vLANE}")
        I(f"v_add_u32 v{vT[1]}, s{sT1}, v{vT[1]}")
        I(f"ds_write_b32 v{vT[1]}, v{vT[0]}")
        ex = self.ex_slots
        assert len(ex) == 4
        I(f"s_cmp_eq_u32 s{sHH}, 0")
        I(f"s_cselect_b32 s{sT0}, {ex[0]}, {ex[1]}")
        I(f"s_cselect_b32 s{sT1}, {ex[2]}, {ex[3]}")
        I(f"s_mul_i32 s{sT0}, s{sT0}, {SLOT}")
        I(f"s_mul_i32 s{sT1}, s{sT1}, {SLOT}")
        I(f"s_lshl_b32 s{sT2}, s{sQH}, 13")
        I(f"s_add_u32 s{sT0}, s{sT0}, s{sT2}")
        I(f"s_add_u32 s{sT1}, s{sT1}, s{sT2}")
        I(f"s_cmp_eq_u32 s{sKH}, 0")
        I(f"s_cselect_b32 s{sT2}, s{sT0}, s{sT1}")
        I(f"s_cselect_b32 s{sT3}, s{sT1}, s{sT0}")
        I(f"v_add_u32 v{vT[0]}, s{sT2}, v{vL16}")
        I(f"v_add_u32 v{vT[1]}, s{sT3}, v{vL16}")
        for k in range(8):
            I(f"ds_write_b128 v{vT[1]}, {vr(OA + 32 + 4 * k, 4)} offset:{1024 * k}")
        a.wait(lgkm=0)
        self.barrier(frees=[U("V", 15)])
        self.assign()
        I(f"v_lshlrev_b32 v{vT[1]}, 5, v{vLANE}")
        I(f"v_add_u32 v{vT[1]}, {SMALL + 4096}, v{vT[1]}")
        I(f"ds_read_b128 {vr(SB[0], 4)}, v{vT[1]}")
        I(f"ds_read_b128 {vr(SB[0] + 4, 4)}, v{vT[1]} offset:16")
        I(f"ds_read_b64 {vr(vT[4], 2)}, v{vT[3]}")
        for k in range(8):
            I(f"ds_read_b128 {vr(QA + 4 * k, 4)}, v{vT[0]} offset:{1024 * k}")
        self.drain_issue()
        S = SB[0]
        I(f"v_or3_b32 v{S}, v{S}, v{S + 1}, v{S + 2}")
        I(f"v_or3_b32 v{S}, v{S}, v{S + 3}, v{S + 4}")
        I(f"v_or3_b32 v{S}, v{S}, v{S + 5}, v{S + 6}")
        I(f"v_or_b32 v{S}, v{S}, v{S + 7}")
        I(f"v_cmp_ne_u32 vcc, 0, v{S}")
        I(f"s_andn2_b64 vcc, vcc, {sr(sPASS, 2)}")
        I(f"s_cmp_lg_u64 vcc, 0")
        I(f"s_cbranch_scc1 L_FALLBACK")
        lo, co, lp, cp = vLS[0], vLS[1], vT[4], vT[5]
        mn, fo, fp = SB[1], SB[1] + 1, SB[1] + 2
        I(f"v_min_f32 v{mn}, v{co}, v{cp}")
        I(f"v_sub_f32 v{fo}, v{mn}, v{co}")
        I(f"v_sub_f32 v{fp}, v{mn}, v{cp}")
        I(f"v_exp_f32 v{fo}, v{fo}")
        I(f"v_exp_f32 v{fp}, v{fp}")
        I(f"v_mul_f32 v{mn}, v{lo}, v{fo}")
        I(f"v_fmac_f32 v{mn}, v{lp}, v{fp}")
        I(f"v_rcp_f32 v{mn}, v{mn}")
        I(f"v_mul_f32 v{fo}, v{fo}, v{mn}")
        I(f"v_mul_f32 v{fp}, v{fp}, v{mn}")
        for f in range(4):
            for j in range(8):
                r = 8 * f + j
                I(f"v_mul_f32 v{OA + r}, v{OA + r}, v{fo}")
                I(f"v_fmac_f32 v{OA + r}, v{QA + r}, v{fp}")
            for j in range(4):
                r = OA + 8 * f + 2 * j
                I(f"v_cvt_pk_bf16_f32 v{QF + 4 * f + j}, v{r}, v{r + 1}")
        a.wait(lgkm=0)
        for f in range(4):
            I(f"ds_write_b128 v{vT[0]}, {vr(QF + 4 * f, 4)} offset:{1024 * f}")
        I(f"v_mov_b32 v{aW}, v{self.aWO0}")
        I(f"v_add_u32 v{aW + 1}, {WIN}, v{aW}")
        I(f"v_add_u32 v{aW + 2}, {2 * WIN}, v{aW}")
        I(f"v_mov_b32 v{aKa}, v{vL16}")
        I(f"v_add_u32 v{aKa + 1}, {WIN}, v{vL16}")
        I(f"v_add_u32 v{aKa + 2}, {2 * WIN}, v{vL16}")
        a.wait(lgkm=0)
        self.barrier()
        self.prof("exchange done")

    def phase3(self):
        a = self.a
        I = a.I
        U = self.unit
        ex = self.ex_slots
        NB = 4

        def reads(k):
            u = U("wo", k)
            a.wait_vm_id(u.last_id)
            u.visible = True
            hh, kh, i = k >> 3, (k >> 2) & 1, k & 3
            for qt in range(2):
                tot = ex[2 * kh + hh] * SLOT + qt * 8192 + i * 1024
                w = tot // WIN
                I(f"ds_read_b128 {vr(128 + (k % NB) * 8 + 4 * qt, 4)}, v{aKa + w} offset:{tot - w * WIN}", tag=("O", k, qt))
            for nt in range(2):
                reg = FB + (k % NB) * 8 + 4 * nt
                for jj in range(2):
                    self.lds_read(u, lambda ar, imm: f"ds_read_b64_tr_b16 {vr(reg + 2 * jj, 2)}, v{ar} offset:{imm}",
                                  jj * 256 + nt * 64, aW, ("wo", k, nt))

        PD = 2
        for k in range(PD):
            reads(k)
        for k in range(16):
            if k + PD < 16:
                reads(k + PD)
            for nt in range(2):
                for qt in range(2):
                    acc = vr(OA + 16 * (2 * nt + qt), 16)
                    ra = FB + (k % NB) * 8 + 4 * nt
                    rb = 128 + (k % NB) * 8 + 4 * qt
                    I(f"v_mfma_f32_32x32x16_bf16 {acc}, {vr(ra, 4)}, {vr(rb, 4)}, {acc if k else 0}",
                      expect={ra: ("wo", k, nt), rb: ("O", k, qt)})
            u = U("wo", k)
            assert not any(r in a.outstanding_ds() for r in u.reads)
            u.freed = True
            self.free.append(u.slot)
            self.assign()
            self.drain_issue()
        self.prof("oproj done")
        I(f"s_lshl_b32 s{sT0}, s{sW}, 13")
        for tile in range(4):
            for s in range(2):
                dst = QF + (tile * 2 + s) * 4
                for j in range(4):
                    r = OA + 16 * tile + 8 * s + 2 * j
                    I(f"v_cvt_pk_bf16_f32 v{dst + j}, v{r}, v{r + 1}")
                off = tile * 2048 + s * 1024
                if off >= 4096:
                    if off == 4096:
                        I(f"s_add_u32 s{sT0}, s{sT0}, 4096")
                    off -= 4096
                I(f"buffer_store_dwordx4 {vr(dst, 4)}, v{vL16}, {sr(S_WS, 4)}, s{sT0} offen offset:{off}")
        if PROFILE:
            a.wait(vm=0)
            self.prof("end")

    def fallback(self):
        a = self.a
        a.reset_state()
        I = a.I
        a.raw("L_FALLBACK:")
        a.raw("    s_waitcnt vmcnt(0) lgkmcnt(0)")
        I("s_nop 15")
        I("s_barrier")
        for u in self.fb_units:
            u.slot = self.fb_slots[(u.kind, u.idx)]
            self.emit_piece(u, 0)
            self.emit_piece(u, 1)
        t0, t1 = vT[0], vT[1]
        I(f"v_and_b32 v{t0}, 31, v{vLANE}")
        I(f"v_lshlrev_b32 v{t0}, 8, v{t0}")
        I(f"v_lshrrev_b32 v{t1}, 5, v{vLANE}")
        I(f"v_lshl_add_u32 v{t0}, v{t1}, 4, v{t0}")
        I(f"s_mul_i32 s{sT0}, s{sKH}, {131072 + 128}")
        I(f"s_mul_i32 s{sT1}, s{sKH}, {131072 - 128}")
        I(f"s_add_u32 s{sT1}, s{sT1}, 128")
        I(f"v_add_u32 v{t1}, s{sT1}, v{t0}")
        I(f"v_add_u32 v{t0}, s{sT0}, v{t0}")
        I(f"v_mov_b32 v{vMT}, 0xff800000")
        I(f"s_mov_b32 s{sT2}, 0")
        a.raw("L_FB_LOOP:")
        for s in range(8):
            I(f"buffer_load_dwordx4 {vr(FB + 4 * s, 4)}, v{t0 if s < 4 else t1}, {sr(S_K, 4)}, s{sT2} offen offset:{32 * (s & 3)}")
        S = SB[0]
        for s in range(8):
            I(f"v_mfma_f32_32x32x16_bf16 {vr(S, 16)}, {vr(FB + 4 * s, 4)}, {vr(QF + 4 * s, 4)}, {vr(S, 16) if s else 0}")
        for k in range(0, 16, 2):
            I(f"v_max3_f32 v{vMT}, v{vMT}, v{S + k}, v{S + k + 1}")
        I(f"s_add_u32 s{sT2}, s{sT2}, 8192")
        I(f"s_cmp_lt_u32 s{sT2}, 131072")
        I("s_nop 7")
        I("s_cbranch_scc1 L_FB_LOOP")
        I(f"v_mov_b32 v{t1}, v{vMT}")
        I(f"v_permlane32_swap_b32 v{vMT}, v{t1}")
        I(f"v_max_f32 v{vMT}, v{vMT}, v{t1}")
        I(f"s_mov_b64 {sr(sPASS, 2)}, -1")
        a.raw("    s_waitcnt vmcnt(0) lgkmcnt(0)")
        I("s_barrier")
        I("s_branch L_ATTN")

    def reduce_kernel(self):
        a = Asm()
        I = a.I
        a.raw(".globl gqa_reduce_kernel\n.p2align 8\n.type gqa_reduce_kernel,@function\ngqa_reduce_kernel:")
        I("s_cmp_ge_u32 s2, 256")
        I("s_cbranch_scc1 L_RED_END")
        I("s_load_dwordx2 s[4:5], s[0:1], 40")
        I("s_load_dwordx2 s[6:7], s[0:1], 56")
        I("s_lshr_b32 s3, s2, 4")
        I("s_and_b32 s16, s2, 15")
        I("v_lshlrev_b32 v1, 4, v0")
        I("s_lshl_b32 s17, s16, 12")
        I("v_add_u32 v1, s17, v1")
        a.raw("    s_waitcnt lgkmcnt(0)")
        I("s_lshl_b32 s17, s3, 20")
        I("s_add_u32 s8, s6, s17")
        I("s_addc_u32 s9, s7, 0")
        I("s_mov_b32 s10, 0x100000")
        I("s_mov_b32 s11, 0x00020000")
        for j in range(16):
            I(f"s_mov_b32 s{20 + j}, {j * 65536}")
        for j in range(16):
            I(f"buffer_load_dwordx4 {vr(8 + 4 * j, 4)}, v1, s[8:11], s{20 + j} offen")
        I("s_lshl_b32 s17, s3, 16")
        I("s_add_u32 s12, s4, s17")
        I("s_addc_u32 s13, s5, 0")
        I("s_mov_b32 s14, 0x10000")
        I("s_mov_b32 s15, 0x00020000")
        I("v_and_b32 v2, 31, v0")
        I("v_bfe_u32 v3, v0, 7, 1")
        I("v_lshl_add_u32 v2, v3, 5, v2")
        I("v_lshlrev_b32 v2, 10, v2")
        I("v_bfe_u32 v3, v0, 5, 2")
        I("v_lshl_add_u32 v2, v3, 4, v2")
        I("s_lshl_b32 s17, s16, 6")
        I("v_add_u32 v2, s17, v2")
        I("s_mov_b32 s18, 0xffff0000")
        acc = 72
        for j in range(16):
            for k in range(4):
                r = 8 + 4 * j + k
                if j == 0:
                    I(f"v_lshlrev_b32 v{acc + 2 * k}, 16, v{r}")
                    I(f"v_and_b32 v{acc + 2 * k + 1}, s18, v{r}")
                else:
                    I(f"v_lshlrev_b32 v4, 16, v{r}")
                    I(f"v_and_b32 v5, s18, v{r}")
                    I(f"v_add_f32 v{acc + 2 * k}, v{acc + 2 * k}, v4")
                    I(f"v_add_f32 v{acc + 2 * k + 1}, v{acc + 2 * k + 1}, v5")
        for k in range(4):
            I(f"v_cvt_pk_bf16_f32 v{4 + k}, v{acc + 2 * k}, v{acc + 2 * k + 1}")
        I("buffer_store_dwordx4 v[4:7], v2, s[12:15], 0 offen")
        a.raw("L_RED_END:")
        a.raw("    s_endpgm")
        return a.text()


def kd(name, vgpr, sgpr=102):
    return f""".amdhsa_kernel {name}
  .amdhsa_next_free_vgpr {vgpr}
  .amdhsa_next_free_sgpr {sgpr}
  .amdhsa_accum_offset {(vgpr + 3) // 4 * 4}
  .amdhsa_group_segment_fixed_size 0
  .amdhsa_kernarg_size 64
  .amdhsa_user_sgpr_count 2
  .amdhsa_user_sgpr_kernarg_segment_ptr 1
  .amdhsa_system_sgpr_workgroup_id_x 1
.end_amdhsa_kernel
"""


def main():
    g = Gen()
    g.main_kernel()
    body = g.a.text()
    red = g.reduce_kernel()
    hdr = open(f"cdna_kernels/{NAME}.s.ref").read().split("; Override launch")[0]
    s = hdr
    s += f"; @launch kernel={NAME}_kernel grid=(256,1,1) block=(512,1,1) lds={LDS_BYTES}\n"
    s += "; @launch kernel=gqa_reduce_kernel grid=(256,1,1) block=(256,1,1) lds=0\n"
    s += '.amdgcn_target "amdgcn-amd-amdhsa--gfx950"\n.text\n'
    s += body + red
    s += '.section .rodata,"a"\n.p2align 6\n' + kd(f"{NAME}_kernel", 256) + ".p2align 6\n" + kd("gqa_reduce_kernel", 80, 48)
    open(OUT, "w").write(s)
    print("counts", g.a.count, "nop states", g.a.nops, file=sys.stderr)


main()
```

```python
import sys, math, struct
from asmlib import Asm, vr, sr

NAME = "standalone__gqa_block_cached__near_ridge"
PROFILE = "--profile" in sys.argv
OUT = sys.argv[1] if len(sys.argv) > 1 and not sys.argv[1].startswith("--") else f"cdna_kernels/{NAME}.s"


def opt(name, default):
    for a in sys.argv:
        if a.startswith(f"--{name}="):
            return int(a.split("=")[1])
    return default


SLOT = 17152
NSLOT = 9
WIN = 3 * SLOT
SMALL = NSLOT * SLOT
LDS_BYTES = 163840
D = opt("D", 6)
NF = opt("NF", 12)
THRESH = 0x53800000
FORCE_FB = opt("forcefb", 0)
ROT = opt("rot", 1)
SAMET = opt("samet", 0)
sROT = 70
NT = opt("nt", 1)
DBGPROF = opt("dbgprof", 0)
ABL = opt("abl", 0)

S_X, S_WQ, S_K, S_V, S_WO, S_WS = 20, 24, 28, 32, 36, 40
sW, sKH, sHH, sQH = 44, 45, 46, 47
sMX, sMV, sMQ, sMO = 48, 49, 50, 51
sPASS = 52
sT0, sT1, sT2, sT3 = 54, 55, 56, 57
sOFF = [60, 61]
sPROF = 64
sTS = 68

vLANE = 1
vX, vWQ, vK, vV, vWO = 2, 3, 4, 5, 6
vL16 = 7
vLS = [8, 9]
vT = [10, 11, 12, 13, 14, 15]
QF = 16
CI = 48
OA = 64
SB = [128, 144]
FB = 160
aKa, aKb, aVa, aVb = 208, 211, 214, 217
aW = 220
aX = 223
QA = 224
XB = 64
vMT = 0
assert FB + 4 * NF <= 208


def f32(x):
    return struct.unpack("<I", struct.pack("<f", x))[0]


class Unit:
    def __init__(self, kind, idx):
        self.kind, self.idx = kind, idx
        self.slot = None
        self.last_id = None
        self.visible = False
        self.reads = []
        self.freed = False

    def __repr__(self):
        return f"{self.kind}{self.idx}"


class Gen:
    def __init__(self):
        self.a = Asm()
        self.free = list(range(NSLOT))
        self.pending = []
        self.units = {}
        self.soff_i = 0
        self.issue_q = []
        self.prof_n = 0
        self.inloop = False

    def unit(self, kind, idx):
        return self.units[(kind, idx)]

    def piece_instrs(self, u, e):
        base = u.slot * SLOT
        k, i = u.kind, u.idx
        if k == "x":
            m0s, lds, so, voff, srd = sMX, base + e * 1040, i * 16384 + e * 1024, vX, S_X
        elif k == "wq":
            m0s, lds, so, voff, srd = sMQ, base + e * 4160, i * 32 * 8192 + e * 8192, vWQ, S_WQ
        elif k == "K":
            m0s, lds, so, voff, srd = sMX, base + e * 1040, i * 8192 + e * 256, vK, S_K
        elif k == "V":
            m0s, lds, so, voff, srd = sMV, base + e * 1088, i * 8192 + e * 256, vV, S_V
        elif k == "wo":
            m0s, lds, so, voff, srd = sMO, base + e * 1088, i * 16384 + e * 2048, vWO, S_WO
        s = sOFF[self.soff_i]
        self.soff_i ^= 1
        if k in ("K", "V") and SAMET:
            so = e * 256
        if k in ("K", "V") and ROT:
            return [f"s_add_u32 s{s}, s{sROT}, {so}", f"s_add_u32 m0, s{m0s}, {lds}", f"s_and_b32 s{s}, s{s}, 0x1ffff",
                    f"buffer_load_dwordx4 v{voff}, {sr(srd, 4)}, s{s} offen {'nt ' if NT else ''}lds"]
        return [f"s_add_u32 m0, s{m0s}, {lds}", f"s_mov_b32 s{s}, {so}",
                f"buffer_load_dwordx4 v{voff}, {sr(srd, 4)}, s{s} offen lds"]

    def emit_piece(self, u, e):
        if (ABL & 1) and self.inloop and u.kind in ("K", "V"):
            u.last_id = -1
            return
        ins = self.piece_instrs(u, e)
        for t in ins[:-1]:
            self.a.I(t)
        u.last_id = self.a.I(ins[-1])

    def assign(self, maxn=99):
        n = 0
        while self.free and self.pending and n < maxn:
            u = self.pending.pop(0)
            u.slot = self.free.pop(0)
            self.issue_q.append((u, 0))
            self.issue_q.append((u, 1))
            n += 1

    def drain_issue(self, n=99):
        while self.issue_q and n > 0:
            u, e = self.issue_q.pop(0)
            self.emit_piece(u, e)
            n -= 1

    def barrier(self, need=(), frees=(), keep=()):
        a = self.a
        for u in need:
            assert u.last_id is not None and not any(q[0] is u for q in self.issue_q), f"{u} not issued"
        if need:
            a.wait_vm_id(max(u.last_id for u in need))
        out = set(a.outstanding_ds())
        for u in list(frees) + list(keep):
            if any(r in out for r in u.reads):
                ids = a.outstanding_ds()
                last = max(ids.index(r) for r in u.reads if r in out)
                a.wait(lgkm=len(ids) - 1 - last)
                out = set(a.outstanding_ds())
        if not ((ABL & 2) and self.inloop):
            a.I("s_barrier")
        for u in need:
            u.visible = True
        for u in frees:
            u.freed = True
            self.free.append(u.slot)
        for u in keep:
            u.freed = True

    def lds_read(self, u, text_fn, off, areg, tag):
        assert u.visible and not u.freed, f"read of {u} vis={u.visible} freed={u.freed}"
        tot = u.slot * SLOT + off
        w = u.slot // 3
        imm = tot - w * WIN
        assert 0 <= imm < 65536
        if (ABL & 8) and self.inloop:
            x = self.a.decode(text_fn(areg + w, imm))
            for rg in x.vw:
                self.a.tags[rg] = tag
            return
        i = self.a.I(text_fn(areg + w, imm), tag=tag)
        u.reads.append(i)

    def prof(self, name):
        if not PROFILE:
            return
        a = self.a
        n = self.prof_n
        self.prof_n += 1
        a.wait(lgkm=0)
        a.I(f"s_memrealtime {sr(sTS, 2)}")
        a.I(f"s_memtime {sr(sTS + 4, 2)}")
        a.raw("    s_waitcnt lgkmcnt(0)")
        a.I(f"v_mov_b32 v{vT[5]}, s{sTS}")
        a.I(f"v_mov_b32 v{vT[4]}, {n * 4}")
        a.I(f"buffer_store_dword v{vT[5]}, v{vT[4]}, {sr(sPROF, 4)}, 0 offen")
        a.I(f"v_mov_b32 v{vT[5]}, s{sTS + 4}")
        a.I(f"buffer_store_dword v{vT[5]}, v{vT[4]}, {sr(sPROF, 4)}, 0 offen offset:128")

    def main_kernel(self):
        a = self.a
        I = a.I
        a.raw(f".globl {NAME}_kernel\n.p2align 8\n.type {NAME}_kernel,@function\n{NAME}_kernel:")
        I("s_cmp_ge_u32 s2, 256")
        I("s_cbranch_scc1 L_MAIN_END")
        I("s_load_dwordx16 s[4:19], s[0:1], 0")
        I("s_getpc_b64 s[58:59]")
        a.raw("L_PC:")
        I(f"v_and_b32 v{vLANE}, 63, v0")
        I(f"v_lshrrev_b32 v{vT[0]}, 6, v0")
        I(f"v_lshlrev_b32 v{vT[1]}, 6, v0")
        I(f"v_readfirstlane_b32 s{sW}, v{vT[0]}")
        I(f"v_min_u32 v{vT[1]}, L_RED_END-L_PC, v{vT[1]}")
        I(f"global_load_dword v{vT[2]}, v{vT[1]}, s[58:59]")
        I(f"s_lshr_b32 s{sKH}, s{sW}, 2")
        I(f"s_and_b32 s{sQH}, s{sW}, 1")
        I(f"s_lshr_b32 s{sHH}, s{sW}, 1")
        I(f"s_and_b32 s{sHH}, s{sHH}, 1")
        I(f"s_mul_i32 s{sMX}, s{sW}, 2080")
        I(f"s_lshr_b32 s{sT0}, s{sW}, 1")
        I(f"s_mul_i32 s{sMV}, s{sT0}, 4288")
        I(f"s_mul_i32 s{sT1}, s{sQH}, 2176")
        I(f"s_add_u32 s{sMV}, s{sMV}, s{sT1}")
        I(f"s_lshl_b32 s{sMQ}, s{sT0}, 10")
        I(f"s_mul_i32 s{sT1}, s{sQH}, 8320")
        I(f"s_add_u32 s{sMQ}, s{sMQ}, s{sT1}")
        I(f"s_mul_i32 s{sMO}, s{sW}, 2144")
        I(f"s_mov_b64 {sr(sPASS, 2)}, 0")
        I("s_and_b32 s62, s2, 7")
        I("s_lshr_b32 s63, s2, 3")
        I("s_and_b32 s63, s63, 1")
        I("s_lshr_b32 s3, s2, 4")
        I(f"s_lshl_b32 s{sROT}, s62, 1")
        I(f"s_add_u32 s{sROT}, s{sROT}, s3")
        I(f"s_and_b32 s{sROT}, s{sROT}, 15")
        I(f"s_lshl_b32 s{sROT}, s{sROT}, 13")
        L = vLANE
        t0, t1, t2, t3 = vT[0], vT[1], vT[3], vT[4]
        I(f"v_lshlrev_b32 v{vL16}, 4, v{L}")
        I(f"s_lshl_b32 s{sT1}, s{sW}, 11")
        I(f"v_add_u32 v{vX}, s{sT1}, v{vL16}")
        I(f"v_lshrrev_b32 v{t0}, 5, v{L}")
        I(f"v_lshlrev_b32 v{t0}, 15, v{t0}")
        I(f"v_and_b32 v{t1}, 31, v{L}")
        I(f"v_lshl_add_u32 v{t0}, v{t1}, 4, v{t0}")
        I(f"s_lshl_b32 s{sT1}, s{sT0}, 16")
        I(f"s_lshl_b32 s{sT2}, s{sQH}, 14")
        I(f"s_add_u32 s{sT1}, s{sT1}, s{sT2}")
        I(f"v_add_u32 v{vWQ}, s{sT1}, v{t0}")
        a.raw("    s_waitcnt lgkmcnt(0)")
        def srd(dst, ptr, off_s, size):
            I(f"s_add_u32 s{dst}, s{ptr}, s{off_s}")
            I(f"s_addc_u32 s{dst + 1}, s{ptr + 1}, 0")
            I(f"s_mov_b32 s{dst + 2}, {size}")
            I(f"s_mov_b32 s{dst + 3}, 0x00020000")
        I(f"s_lshl_b32 s{sT1}, s3, 16")
        srd(S_X, 4, sT1, 65536)
        I(f"s_lshl_b32 s{sT1}, s62, 10")
        I(f"s_lshl_b32 s{sT2}, s63, 9")
        I(f"s_add_u32 s{sT1}, s{sT1}, s{sT2}")
        srd(S_WQ, 10, sT1, 511 * 8192 + 512)
        order = [("x", i) for i in range(4)] + [("wq", i) for i in range(16)]
        order += [("K", 0)]
        for t in range(15):
            order += [("K", t + 1), ("V", t)]
        order += [("V", 15)]
        order += [("wo", i) for i in range(16)]
        for k, i in order:
            u = Unit(k, i)
            self.units[(k, i)] = u
            self.pending.append(u)
        self.assign()
        self.drain_issue()
        I(f"s_lshl_b32 s{sT1}, s3, 3")
        I(f"s_add_u32 s{sT1}, s{sT1}, s62")
        I(f"s_lshl_b32 s{sT1}, s{sT1}, 18")
        srd(S_K, 6, sT1, 262144)
        srd(S_V, 8, sT1, 262144)
        I(f"s_lshl_b32 s{sT1}, s62, 19")
        I(f"s_lshl_b32 s{sT2}, s63, 18")
        I(f"s_add_u32 s{sT1}, s{sT1}, s{sT2}")
        srd(S_WO, 12, sT1, 262144)
        I(f"s_lshl_b32 s{sT1}, s3, 4")
        I(f"s_lshl_b32 s{sT2}, s62, 1")
        I(f"s_add_u32 s{sT1}, s{sT1}, s{sT2}")
        I(f"s_add_u32 s{sT1}, s{sT1}, s63")
        I(f"s_lshl_b32 s{sT1}, s{sT1}, 16")
        srd(S_WS, 18, sT1, 65536)
        if PROFILE:
            I(f"s_lshl_b32 s{sT1}, s2, 3")
            I(f"s_add_u32 s{sT1}, s{sT1}, s{sW}")
            I(f"s_lshl_b32 s{sT1}, s{sT1}, 8")
            I(f"s_add_u32 s{sT1}, s{sT1}, 0x2000000")
            srd(sPROF, 18, sT1, 256)
            self.prof("start")
        I(f"v_lshrrev_b32 v{t0}, 5, v{L}")
        I(f"v_bfe_u32 v{t1}, v{L}, 4, 1")
        I(f"v_and_b32 v{t2}, 15, v{L}")
        I(f"v_lshlrev_b32 v{vK}, 17, v{t0}")
        I(f"v_lshl_add_u32 v{vK}, v{t1}, 12, v{vK}")
        I(f"v_lshl_add_u32 v{vK}, v{t2}, 4, v{vK}")
        I(f"s_lshl_b32 s{sT1}, s{sW}, 9")
        I(f"v_add_u32 v{vK}, s{sT1}, v{vK}")
        I(f"v_lshrrev_b32 v{t3}, 4, v{L}")
        I(f"v_lshlrev_b32 v{vV}, 10, v{t3}")
        I(f"v_lshl_add_u32 v{vV}, v{t2}, 4, v{vV}")
        I(f"s_lshl_b32 s{sT1}, s{sKH}, 17")
        I(f"s_lshl_b32 s{sT2}, s{sHH}, 12")
        I(f"s_add_u32 s{sT1}, s{sT1}, s{sT2}")
        I(f"s_lshl_b32 s{sT2}, s{sQH}, 9")
        I(f"s_add_u32 s{sT1}, s{sT1}, s{sT2}")
        I(f"v_add_u32 v{vV}, s{sT1}, v{vV}")
        I(f"v_lshlrev_b32 v{vWO}, 12, v{t3}")
        I(f"v_bfe_u32 v{t3}, v{L}, 3, 1")
        I(f"v_lshl_add_u32 v{vWO}, v{t3}, 10, v{vWO}")
        I(f"v_and_b32 v{t3}, 7, v{L}")
        I(f"v_lshl_add_u32 v{vWO}, v{t3}, 4, v{vWO}")
        I(f"s_lshl_b32 s{sT1}, s{sW}, 7")
        I(f"v_add_u32 v{vWO}, s{sT1}, v{vWO}")
        I(f"v_mul_u32_u24 v{aX}, 1040, v{t2}")
        I(f"v_lshl_add_u32 v{aX}, v{t0}, 4, v{aX}")
        I(f"v_lshl_add_u32 v{aKa}, v{t1}, 8, v{aX}")
        I(f"v_mul_u32_u24 v{t3}, {SLOT}, v{t1}")
        I(f"v_add_u32 v{aX}, v{aX}, v{t3}")
        I(f"s_mul_i32 s{sT1}, s{sQH}, {2 * SLOT}")
        I(f"v_add_u32 v{aX}, s{sT1}, v{aX}")
        I(f"s_mul_i32 s{sT1}, s{sKH}, 640")
        I(f"s_mul_i32 s{sT2}, s{sKH}, 384")
        I(f"s_add_u32 s{sT2}, s{sT2}, 128")
        I(f"v_add_u32 v{aKb}, s{sT2}, v{aKa}")
        I(f"v_add_u32 v{aKa}, s{sT1}, v{aKa}")
        trc = vT[5]
        I(f"v_and_b32 v{t3}, 1, v{L}")
        I(f"v_lshlrev_b32 v{trc}, 4, v{t3}")
        I(f"v_bfe_u32 v{t3}, v{L}, 1, 1")
        I(f"v_lshl_add_u32 v{trc}, v{t3}, 3, v{trc}")
        I(f"v_lshl_add_u32 v{trc}, v{t1}, 5, v{trc}")
        I(f"v_bfe_u32 v{t2}, v{L}, 2, 2")
        I(f"v_mul_u32_u24 v{aVa}, 1088, v{t2}")
        I(f"v_lshl_add_u32 v{aVa}, v{t0}, 8, v{aVa}")
        I(f"v_add_u32 v{aVa}, v{aVa}, v{trc}")
        I(f"s_mul_i32 s{sT1}, s{sKH}, {8576 + 128}")
        I(f"s_mul_i32 s{sT2}, s{sKH}, {8576 - 128}")
        I(f"s_add_u32 s{sT2}, s{sT2}, 128")
        I(f"v_add_u32 v{aVb}, s{sT2}, v{aVa}")
        I(f"v_add_u32 v{aVa}, s{sT1}, v{aVa}")
        I(f"v_mul_u32_u24 v{aW}, 4160, v{t2}")
        I(f"v_lshl_add_u32 v{aW}, v{t0}, 10, v{aW}")
        I(f"v_add_u32 v{aW}, v{aW}, v{trc}")
        I(f"s_lshl_b32 s{sT1}, s{sHH}, 8")
        I(f"s_lshl_b32 s{sT2}, s{sKH}, 7")
        I(f"s_add_u32 s{sT1}, s{sT1}, s{sT2}")
        I(f"v_add_u32 v{aW}, s{sT1}, v{aW}")
        for base in (aKa, aKb, aVa, aVb, aW):
            I(f"v_add_u32 v{base + 1}, {WIN}, v{base}")
            I(f"v_add_u32 v{base + 2}, {2 * WIN}, v{base}")
        aWO0 = vT[2]
        I(f"v_lshrrev_b32 v{t3}, 1, v{t2}")
        I(f"v_mul_u32_u24 v{aWO0}, 1088, v{t3}")
        I(f"v_lshl_add_u32 v{aWO0}, v{t0}, 9, v{aWO0}")
        I(f"v_and_b32 v{t3}, 1, v{t2}")
        I(f"v_lshl_add_u32 v{aWO0}, v{t3}, 7, v{aWO0}")
        I(f"v_add_u32 v{aWO0}, v{aWO0}, v{trc}")
        I(f"v_add_u32 v{aWO0}, s{sMO}, v{aWO0}")
        self.aWO0 = aWO0

        self.phase1()
        self.attention()
        self.phase3()
        a.raw("L_MAIN_END:")
        a.raw("    s_endpgm")
        self.fallback()

    def phase1(self):
        a = self.a
        I = a.I
        U = self.unit
        xs = [U("x", i) for i in range(4)]
        assert [u.slot for u in xs] == [0, 1, 2, 3]
        self.barrier(need=xs + [U("wq", 0)])
        self.prof("x+wq0 landed")

        def xread(s):
            i = I(f"ds_read_b128 {vr(XB + 4 * s, 4)}, v{aX} offset:{32 * s}", tag=("x", s))
            for u in xs:
                u.reads.append(i)

        def wqread(i):
            u = U("wq", i)
            for s2 in range(2):
                for dt2 in range(2):
                    reg = QF + (i % 2) * 16 + (s2 * 2 + dt2) * 4
                    for jj in range(2):
                        self.lds_read(u, lambda ar, imm: f"ds_read_b64_tr_b16 {vr(reg + 2 * jj, 2)}, v{ar} offset:{imm}",
                                      (4 * s2 + jj) * 512 + dt2 * 64, aW, ("wq", i, s2, dt2))

        def mm(i):
            for s2 in range(2):
                for dt2 in range(2):
                    reg = QF + (i % 2) * 16 + (s2 * 2 + dt2) * 4
                    s = 2 * i + s2
                    acc = vr(QA + 16 * dt2, 16)
                    I(f"v_mfma_f32_32x32x16_bf16 {acc}, {vr(reg, 4)}, {vr(XB + 4 * s, 4)}, {acc if s else 0}",
                      expect={reg: ("wq", i, s2, dt2), XB + 4 * s: ("x", s)})
                    self.drain_issue(1)

        self.qx = []
        for i in range(16):
            wqread(i)
            if i < 4:
                for s in range(8 * i, 8 * i + 8):
                    xread(s)
            if i > 0:
                mm(i - 1)
            self.drain_issue()
            if i < 15:
                frees = [U("wq", i)] + (xs if i == 3 else [])
                if i in (13, 14):
                    self.barrier(need=[U("wq", i + 1)], keep=[U("wq", i)])
                    self.qx.append(U("wq", i).slot)
                else:
                    self.barrier(need=[U("wq", i + 1)], frees=frees)
                self.assign()
        mm(15)
        self.prof("qproj done")
        c = math.log2(math.e) / math.sqrt(128.0)
        I(f"s_mov_b32 s{sT0}, {f32(c):#x}")
        I(f"s_cmp_eq_u32 s{sKH}, 0")
        I(f"s_cselect_b32 s{sT1}, {self.qx[0]}, {self.qx[1]}")
        I(f"s_cselect_b32 s{sT2}, {self.qx[1]}, {self.qx[0]}")
        I(f"s_mul_i32 s{sT1}, s{sT1}, {SLOT}")
        I(f"s_mul_i32 s{sT2}, s{sT2}, {SLOT}")
        I(f"s_and_b32 s{sT3}, s{sW}, 3")
        I(f"s_lshl_b32 s{sT3}, s{sT3}, 12")
        I(f"s_add_u32 s{sT1}, s{sT1}, s{sT3}")
        I(f"s_add_u32 s{sT2}, s{sT2}, s{sT3}")
        I(f"v_add_u32 v{vT[0]}, s{sT1}, v{vL16}")
        I(f"v_add_u32 v{vT[1]}, s{sT2}, v{vL16}")
        for f in range(4):
            for j in range(8):
                r = QA + 8 * f + j
                I(f"v_mul_f32 v{r}, s{sT0}, v{r}")
            for j in range(4):
                r = QA + 8 * f + 2 * j
                I(f"v_cvt_pk_bf16_f32 v{QF + 4 * f + j}, v{r}, v{r + 1}", tag=("Q", f))
            I(f"ds_write_b128 v{vT[0]}, {vr(QF + 4 * f, 4)} offset:{1024 * f}")
        a.wait(lgkm=0)
        self.barrier(need=[U("K", 0)], frees=[U("wq", 15)])
        self.assign()
        for f in range(4):
            I(f"ds_read_b128 {vr(QF + 16 + 4 * f, 4)}, v{vT[1]} offset:{1024 * f}", tag=("Q", 4 + f))
        self.drain_issue()
        a.wait(lgkm=0)
        self.fb_units = [u for u in self.units.values() if u.kind in ("K", "V") and u.last_id is not None]
        self.fb_slots = {(u.kind, u.idx): u.slot for u in self.fb_units}

    def kread(self, t, s, fb):
        u = self.unit("K", t)
        reg = FB + 4 * fb
        self.lds_read(u, lambda ar, imm: f"ds_read_b128 {vr(reg, 4)}, v{ar} offset:{imm}",
                      32 * (s & 3), aKa if s < 4 else aKb, ("K", t, s))

    def vread(self, t, ks, j, fb):
        u = self.unit("V", t)
        reg = FB + 4 * fb
        for jj in range(2):
            self.lds_read(u, lambda ar, imm: f"ds_read_b64_tr_b16 {vr(reg + 2 * jj, 2)}, v{ar} offset:{imm}",
                          ks * 4288 + jj * 512 + (j & 1) * 64, aVa if j < 2 else aVb, ("V", t, ks, j))

    def attention(self):
        a = self.a
        I = a.I
        U = self.unit
        a.raw("L_ATTN:")
        a.I("s_nop 7")
        I(f"v_mov_b32 v{vLS[0]}, 0")
        I(f"v_mov_b32 v{vLS[1]}, 0")
        for s in range(8):
            self.kread(0, s, s)
        S0 = SB[0]
        for s in range(8):
            I(f"v_mfma_f32_32x32x16_bf16 {vr(S0, 16)}, {vr(FB + 4 * s, 4)}, {vr(QF + 4 * s, 4)}, {vr(S0, 16) if s else 0}",
              expect={FB + 4 * s: ("K", 0, s), QF + 4 * s: ("Q", s)})
        qxu = []
        for sl in self.qx:
            u = Unit("qx", sl)
            u.slot = sl
            qxu.append(u)
        self.barrier(need=[U("K", 1), U("V", 0)], frees=[U("K", 0)] + qxu)
        self.assign()

        seq = []
        for t in range(16):
            if t < 15:
                seq += [("QK", t + 1, s) for s in range(8)]
            seq += [("PV", t, ks, j) for ks in range(2) for j in range(4)]
        n = len(seq)
        pos_qk0 = {op[1]: g for g, op in enumerate(seq) if op[0] == "QK" and op[2] == 0}
        pos_pv0 = {op[1]: g for g, op in enumerate(seq) if op[0] == "PV" and op[2] == 0 and op[3] == 0}
        fill = {g: [] for g in range(-1, n + 1)}

        def read_for(g):
            op = seq[g]
            if op[0] == "QK":
                self.kread(op[1], op[2], g % NF)
            else:
                self.vread(op[1], op[2], op[3], g % NF)

        def sm_a(t, i):
            S = SB[t % 2]
            def f():
                if ABL & 4:
                    return
                if t == 0:
                    I(f"v_add_f32 v{S + 2 * i}, v{CI}, v{S + 2 * i}")
                    I(f"v_add_f32 v{S + 2 * i + 1}, v{CI}, v{S + 2 * i + 1}")
                I(f"v_exp_f32 v{S + 2 * i}, v{S + 2 * i}")
                I(f"v_exp_f32 v{S + 2 * i + 1}, v{S + 2 * i + 1}")
            return f

        def sm_b(t, i):
            S = SB[t % 2]
            def f():
                if ABL & 4:
                    a.tags[S + i] = ("P", t, i)
                    return
                I(f"v_add_f32 v{vLS[0]}, v{vLS[0]}, v{S + 2 * i}")
                I(f"v_add_f32 v{vLS[1]}, v{vLS[1]}, v{S + 2 * i + 1}")
                I(f"v_cvt_pk_bf16_f32 v{S + i}, v{S + 2 * i}, v{S + 2 * i + 1}", tag=("P", t, i))
            return f

        for t in range(16):
            if t == 0:
                for i in range(8):
                    g = i if i < 4 else i + 2
                    fill[g - 1].append(sm_a(t, i))
                    fill[g].append(sm_b(t, i))
            elif t < 15:
                start = pos_qk0[t] + 8 + 2
                for i in range(8):
                    fill[start + 2 * i].append(sm_a(t, i))
                    fill[start + 2 * i + 1].append(sm_b(t, i))
            else:
                start = pos_qk0[t] + 8 + 2
                for i in range(8):
                    fill[start + i].append(sm_a(t, i))
                    fill[start + i + 1].append(sm_b(t, i))
        bar_at = {}
        for t in range(1, 17):
            g_first = pos_pv0[t - 1] + 8
            bar_at[g_first - D] = t
        self.ex_slots = []

        for g in range(D):
            read_for(g)
        self.drain_issue()
        m = vT[0]
        I(f"v_max3_f32 v{m}, v{S0}, v{S0 + 1}, v{S0 + 2}")
        for k in range(3, 15, 2):
            I(f"v_max3_f32 v{m}, v{m}, v{S0 + k}, v{S0 + k + 1}")
        I(f"v_max_f32 v{m}, v{m}, v{S0 + 15}")
        I(f"v_mov_b32 v{vT[1]}, v{m}")
        I(f"v_permlane32_swap_b32 v{m}, v{vT[1]}")
        I(f"v_max_f32 v{m}, v{m}, v{vT[1]}")
        I(f"v_cndmask_b32 v{m}, v{m}, v{vMT}, {sr(sPASS, 2)}")
        for k in range(16):
            I(f"v_sub_f32 v{CI + k}, 0, v{m}")
        for f in fill[-1]:
            f()
        self.prof("loop start")
        self.inloop = True
        for g, op in enumerate(seq):
            if g in bar_at:
                t = bar_at[g]
                need = [U(k, i) for k, i in (("K", t + 1), ("V", t)) if (k, i) in self.units]
                rel = [U(k, i) for k, i in (("K", t), ("V", t - 2)) if (k, i) in self.units]
                nkeep = {14: 1, 15: 2, 16: 1}.get(t, 0)
                keep = rel[:nkeep]
                self.barrier(need=need, frees=rel[nkeep:], keep=keep)
                self.ex_slots += [u.slot for u in keep]
                self.assign()
            if g + D < n:
                read_for(g + D)
            fb = FB + 4 * (g % NF)
            if op[0] == "QK":
                t, s = op[1], op[2]
                S = SB[t % 2]
                I(f"v_mfma_f32_32x32x16_bf16 {vr(S, 16)}, {vr(fb, 4)}, {vr(QF + 4 * s, 4)}, {vr(S, 16) if s else vr(CI, 16)}",
                  expect={fb: ("K", t, s)})
            else:
                t, ks, j = op[1:]
                S = SB[t % 2]
                acc = vr(OA + 16 * j, 16)
                I(f"v_mfma_f32_32x32x16_bf16 {acc}, {vr(fb, 4)}, {vr(S + 4 * ks, 4)}, {acc if (t or ks) else 0}",
                  expect={fb: ("V", t, ks, j), S + 4 * ks: ("P", t, 4 * ks), S + 4 * ks + 3: ("P", t, 4 * ks + 3)})
            for f in fill[g]:
                f()
            self.drain_issue(1)
        self.drain_issue()
        self.inloop = False
        self.prof("attn done")

        l = vLS[0]
        I(f"v_add_f32 v{l}, v{vLS[0]}, v{vLS[1]}")
        I(f"v_mov_b32 v{vLS[1]}, v{l}")
        I(f"v_permlane32_swap_b32 v{l}, v{vLS[1]}")
        I(f"v_add_f32 v{l}, v{l}, v{vLS[1]}")
        I(f"v_mov_b32 v{vLS[1]}, v{CI}")
        I(f"s_mov_b32 s{sT0}, {THRESH if not FORCE_FB else 0:#x}")
        I(f"v_cmp_nge_f32 vcc, s{sT0}, v{l}")
        I(f"v_cndmask_b32 v{vT[0]}, 0, 1, vcc")
        I(f"s_lshl_b32 s{sT1}, s{sW}, 9")
        I(f"s_add_u32 s{sT1}, s{sT1}, {SMALL}")
        I(f"v_lshlrev_b32 v{vT[1]}, 3, v{vLANE}")
        I(f"v_add_u32 v{vT[3]}, s{sT1}, v{vT[1]}")
        I(f"ds_write_b64 v{vT[3]}, {vr(vLS[0], 2)}")
        I(f"s_xor_b32 s{sT1}, s{sW}, 4")
        I(f"s_lshl_b32 s{sT1}, s{sT1}, 9")
        I(f"s_add_u32 s{sT1}, s{sT1}, {SMALL}")
        I(f"v_add_u32 v{vT[3]}, s{sT1}, v{vT[1]}")
        I(f"s_lshl_b32 s{sT1}, s{sW}, 8")
        I(f"s_add_u32 s{sT1}, s{sT1}, {SMALL + 4096}")
        I(f"v_lshlrev_b32 v{vT[1]}, 2, v{vLANE}")
        I(f"v_add_u32 v{vT[1]}, s{sT1}, v{vT[1]}")
        I(f"ds_write_b32 v{vT[1]}, v{vT[0]}")
        ex = self.ex_slots
        assert len(ex) == 4
        I(f"s_cmp_eq_u32 s{sHH}, 0")
        I(f"s_cselect_b32 s{sT0}, {ex[0]}, {ex[1]}")
        I(f"s_cselect_b32 s{sT1}, {ex[2]}, {ex[3]}")
        I(f"s_mul_i32 s{sT0}, s{sT0}, {SLOT}")
        I(f"s_mul_i32 s{sT1}, s{sT1}, {SLOT}")
        I(f"s_lshl_b32 s{sT2}, s{sQH}, 13")
        I(f"s_add_u32 s{sT0}, s{sT0}, s{sT2}")
        I(f"s_add_u32 s{sT1}, s{sT1}, s{sT2}")
        I(f"s_cmp_eq_u32 s{sKH}, 0")
        I(f"s_cselect_b32 s{sT2}, s{sT0}, s{sT1}")
        I(f"s_cselect_b32 s{sT3}, s{sT1}, s{sT0}")
        I(f"v_add_u32 v{vT[0]}, s{sT2}, v{vL16}")
        I(f"v_add_u32 v{vT[1]}, s{sT3}, v{vL16}")
        for k in range(8):
            I(f"ds_write_b128 v{vT[1]}, {vr(OA + 32 + 4 * k, 4)} offset:{1024 * k}")
        a.wait(lgkm=0)
        self.barrier(frees=[U("V", 15)])
        self.assign()
        I(f"v_lshlrev_b32 v{vT[1]}, 5, v{vLANE}")
        I(f"v_add_u32 v{vT[1]}, {SMALL + 4096}, v{vT[1]}")
        I(f"ds_read_b128 {vr(SB[0], 4)}, v{vT[1]}")
        I(f"ds_read_b128 {vr(SB[0] + 4, 4)}, v{vT[1]} offset:16")
        I(f"ds_read_b64 {vr(vT[4], 2)}, v{vT[3]}")
        for k in range(8):
            I(f"ds_read_b128 {vr(QA + 4 * k, 4)}, v{vT[0]} offset:{1024 * k}")
        self.drain_issue()
        S = SB[0]
        I(f"v_or3_b32 v{S}, v{S}, v{S + 1}, v{S + 2}")
        I(f"v_or3_b32 v{S}, v{S}, v{S + 3}, v{S + 4}")
        I(f"v_or3_b32 v{S}, v{S}, v{S + 5}, v{S + 6}")
        I(f"v_or_b32 v{S}, v{S}, v{S + 7}")
        I(f"v_cmp_ne_u32 vcc, 0, v{S}")
        I(f"s_andn2_b64 vcc, vcc, {sr(sPASS, 2)}")
        I(f"s_cmp_lg_u64 vcc, 0")
        I(f"s_cbranch_scc1 L_FALLBACK")
        lo, co, lp, cp = vLS[0], vLS[1], vT[4], vT[5]
        mn, fo, fp = SB[1], SB[1] + 1, SB[1] + 2
        I(f"v_min_f32 v{mn}, v{co}, v{cp}")
        I(f"v_sub_f32 v{fo}, v{mn}, v{co}")
        I(f"v_sub_f32 v{fp}, v{mn}, v{cp}")
        I(f"v_exp_f32 v{fo}, v{fo}")
        I(f"v_exp_f32 v{fp}, v{fp}")
        I(f"v_mul_f32 v{mn}, v{lo}, v{fo}")
        I(f"v_fmac_f32 v{mn}, v{lp}, v{fp}")
        I(f"v_rcp_f32 v{mn}, v{mn}")
        I(f"v_mul_f32 v{fo}, v{fo}, v{mn}")
        I(f"v_mul_f32 v{fp}, v{fp}, v{mn}")
        for f in range(4):
            for j in range(8):
                r = 8 * f + j
                I(f"v_mul_f32 v{OA + r}, v{OA + r}, v{fo}")
                I(f"v_fmac_f32 v{OA + r}, v{QA + r}, v{fp}")
            for j in range(4):
                r = OA + 8 * f + 2 * j
                I(f"v_cvt_pk_bf16_f32 v{QF + 4 * f + j}, v{r}, v{r + 1}")
        a.wait(lgkm=0)
        for f in range(4):
            I(f"ds_write_b128 v{vT[0]}, {vr(QF + 4 * f, 4)} offset:{1024 * f}")
        I(f"v_mov_b32 v{aW}, v{self.aWO0}")
        I(f"v_add_u32 v{aW + 1}, {WIN}, v{aW}")
        I(f"v_add_u32 v{aW + 2}, {2 * WIN}, v{aW}")
        I(f"v_mov_b32 v{aKa}, v{vL16}")
        I(f"v_add_u32 v{aKa + 1}, {WIN}, v{vL16}")
        I(f"v_add_u32 v{aKa + 2}, {2 * WIN}, v{vL16}")
        a.wait(lgkm=0)
        self.barrier()
        self.prof("exchange done")

    def phase3(self):
        a = self.a
        I = a.I
        U = self.unit
        ex = self.ex_slots
        NB = 4

        def reads(k):
            u = U("wo", k)
            a.wait_vm_id(u.last_id)
            u.visible = True
            hh, kh, i = k >> 3, (k >> 2) & 1, k & 3
            for qt in range(2):
                tot = ex[2 * kh + hh] * SLOT + qt * 8192 + i * 1024
                w = tot // WIN
                I(f"ds_read_b128 {vr(128 + (k % NB) * 8 + 4 * qt, 4)}, v{aKa + w} offset:{tot - w * WIN}", tag=("O", k, qt))
            for nt in range(2):
                reg = FB + (k % NB) * 8 + 4 * nt
                for jj in range(2):
                    self.lds_read(u, lambda ar, imm: f"ds_read_b64_tr_b16 {vr(reg + 2 * jj, 2)}, v{ar} offset:{imm}",
                                  jj * 256 + nt * 64, aW, ("wo", k, nt))

        PD = 2
        for k in range(PD):
            reads(k)
        for k in range(16):
            if k + PD < 16:
                reads(k + PD)
            for nt in range(2):
                for qt in range(2):
                    acc = vr(OA + 16 * (2 * nt + qt), 16)
                    ra = FB + (k % NB) * 8 + 4 * nt
                    rb = 128 + (k % NB) * 8 + 4 * qt
                    I(f"v_mfma_f32_32x32x16_bf16 {acc}, {vr(ra, 4)}, {vr(rb, 4)}, {acc if k else 0}",
                      expect={ra: ("wo", k, nt), rb: ("O", k, qt)})
            u = U("wo", k)
            assert not any(r in a.outstanding_ds() for r in u.reads)
            u.freed = True
            self.free.append(u.slot)
            self.assign()
            self.drain_issue()
        self.prof("oproj done")
        I(f"s_lshl_b32 s{sT0}, s{sW}, 13")
        for tile in range(4):
            for s in range(2):
                dst = QF + (tile * 2 + s) * 4
                for j in range(4):
                    r = OA + 16 * tile + 8 * s + 2 * j
                    I(f"v_cvt_pk_bf16_f32 v{dst + j}, v{r}, v{r + 1}")
                off = tile * 2048 + s * 1024
                if off >= 4096:
                    if off == 4096:
                        I(f"s_add_u32 s{sT0}, s{sT0}, 4096")
                    off -= 4096
                I(f"buffer_store_dwordx4 {vr(dst, 4)}, v{vL16}, {sr(S_WS, 4)}, s{sT0} offen offset:{off}")
        if PROFILE:
            a.wait(vm=0)
            self.prof("end")

    def fallback(self):
        a = self.a
        a.reset_state()
        I = a.I
        a.raw("L_FALLBACK:")
        a.raw("    s_waitcnt vmcnt(0) lgkmcnt(0)")
        I("s_nop 15")
        I("s_barrier")
        for u in self.fb_units:
            u.slot = self.fb_slots[(u.kind, u.idx)]
            self.emit_piece(u, 0)
            self.emit_piece(u, 1)
        t0, t1 = vT[0], vT[1]
        I(f"v_and_b32 v{t0}, 31, v{vLANE}")
        I(f"v_lshlrev_b32 v{t0}, 8, v{t0}")
        I(f"v_lshrrev_b32 v{t1}, 5, v{vLANE}")
        I(f"v_lshl_add_u32 v{t0}, v{t1}, 4, v{t0}")
        I(f"s_mul_i32 s{sT0}, s{sKH}, {131072 + 128}")
        I(f"s_mul_i32 s{sT1}, s{sKH}, {131072 - 128}")
        I(f"s_add_u32 s{sT1}, s{sT1}, 128")
        I(f"v_add_u32 v{t1}, s{sT1}, v{t0}")
        I(f"v_add_u32 v{t0}, s{sT0}, v{t0}")
        I(f"v_mov_b32 v{vMT}, 0xff800000")
        I(f"s_mov_b32 s{sT2}, 0")
        a.raw("L_FB_LOOP:")
        for s in range(8):
            I(f"buffer_load_dwordx4 {vr(FB + 4 * s, 4)}, v{t0 if s < 4 else t1}, {sr(S_K, 4)}, s{sT2} offen offset:{32 * (s & 3)}")
        S = SB[0]
        for s in range(8):
            I(f"v_mfma_f32_32x32x16_bf16 {vr(S, 16)}, {vr(FB + 4 * s, 4)}, {vr(QF + 4 * s, 4)}, {vr(S, 16) if s else 0}")
        for k in range(0, 16, 2):
            I(f"v_max3_f32 v{vMT}, v{vMT}, v{S + k}, v{S + k + 1}")
        I(f"s_add_u32 s{sT2}, s{sT2}, 8192")
        I(f"s_cmp_lt_u32 s{sT2}, 131072")
        I("s_nop 7")
        I("s_cbranch_scc1 L_FB_LOOP")
        I(f"v_mov_b32 v{t1}, v{vMT}")
        I(f"v_permlane32_swap_b32 v{vMT}, v{t1}")
        I(f"v_max_f32 v{vMT}, v{vMT}, v{t1}")
        I(f"s_mov_b64 {sr(sPASS, 2)}, -1")
        a.raw("    s_waitcnt vmcnt(0) lgkmcnt(0)")
        I("s_barrier")
        I("s_branch L_ATTN")

    def reduce_kernel(self):
        a = Asm()
        I = a.I
        a.raw(".globl gqa_reduce_kernel\n.p2align 8\n.type gqa_reduce_kernel,@function\ngqa_reduce_kernel:")
        I("s_cmp_ge_u32 s2, 256")
        I("s_cbranch_scc1 L_RED_END")
        I("s_load_dwordx2 s[4:5], s[0:1], 40")
        I("s_load_dwordx2 s[6:7], s[0:1], 56")
        I("s_lshr_b32 s3, s2, 4")
        I("s_and_b32 s16, s2, 15")
        I("v_lshlrev_b32 v1, 4, v0")
        I("s_lshl_b32 s17, s16, 12")
        I("v_add_u32 v1, s17, v1")
        a.raw("    s_waitcnt lgkmcnt(0)")
        I("s_lshl_b32 s17, s3, 20")
        I("s_add_u32 s8, s6, s17")
        I("s_addc_u32 s9, s7, 0")
        I("s_mov_b32 s10, 0x100000")
        I("s_mov_b32 s11, 0x00020000")
        for j in range(16):
            I(f"s_mov_b32 s{20 + j}, {j * 65536}")
        for j in range(16):
            I(f"buffer_load_dwordx4 {vr(8 + 4 * j, 4)}, v1, s[8:11], s{20 + j} offen")
        I("s_lshl_b32 s17, s3, 16")
        I("s_add_u32 s12, s4, s17")
        I("s_addc_u32 s13, s5, 0")
        I("s_mov_b32 s14, 0x10000")
        I("s_mov_b32 s15, 0x00020000")
        I("v_and_b32 v2, 31, v0")
        I("v_bfe_u32 v3, v0, 7, 1")
        I("v_lshl_add_u32 v2, v3, 5, v2")
        I("v_lshlrev_b32 v2, 10, v2")
        I("v_bfe_u32 v3, v0, 5, 2")
        I("v_lshl_add_u32 v2, v3, 4, v2")
        I("s_lshl_b32 s17, s16, 6")
        I("v_add_u32 v2, s17, v2")
        I("s_mov_b32 s18, 0xffff0000")
        acc = 72
        for j in range(16):
            for k in range(4):
                r = 8 + 4 * j + k
                if j == 0:
                    I(f"v_lshlrev_b32 v{acc + 2 * k}, 16, v{r}")
                    I(f"v_and_b32 v{acc + 2 * k + 1}, s18, v{r}")
                else:
                    I(f"v_lshlrev_b32 v4, 16, v{r}")
                    I(f"v_and_b32 v5, s18, v{r}")
                    I(f"v_add_f32 v{acc + 2 * k}, v{acc + 2 * k}, v4")
                    I(f"v_add_f32 v{acc + 2 * k + 1}, v{acc + 2 * k + 1}, v5")
        for k in range(4):
            I(f"v_cvt_pk_bf16_f32 v{4 + k}, v{acc + 2 * k}, v{acc + 2 * k + 1}")
        I("buffer_store_dwordx4 v[4:7], v2, s[12:15], 0 offen")
        if DBGPROF:
            I("s_cmp_lg_u32 s2, 0")
            I("s_cbranch_scc1 L_RED_END")
            I("s_load_dwordx2 s[40:41], s[0:1], 48")
            I("s_memrealtime s[42:43]")
            a.raw("    s_waitcnt lgkmcnt(0)")
            I("s_add_u32 s36, s6, 0x2000000")
            I("s_addc_u32 s37, s7, 0")
            I("s_mov_b32 s38, 0x100000")
            I("s_mov_b32 s39, 0x00020000")
            I("s_mov_b32 s44, s40")
            I("s_mov_b32 s45, s41")
            I("s_mov_b32 s46, 64")
            I("s_mov_b32 s47, 0x00020000")
            I("v_and_b32 v1, 7, v0")
            I("v_lshlrev_b32 v1, 2, v1")
            I("v_bfe_u32 v3, v0, 3, 1")
            I(f"v_mul_u32_u24 v3, {(133 * 8 + 7) * 256}, v3")
            I("v_add_u32 v1, v1, v3")
            I("buffer_load_dword v4, v1, s[36:39], 0 offen")
            I("v_mov_b32 v5, s42")
            I("v_cmp_eq_u32 vcc, 8, v0")
            I("v_cndmask_b32 v4, v4, v5, vcc")
            I("v_lshlrev_b32 v1, 2, v0")
            I("buffer_store_dword v4, v1, s[44:47], 0 offen")
        a.raw("L_RED_END:")
        a.raw("    s_endpgm")
        return a.text()


def kd(name, vgpr, sgpr=102):
    return f""".amdhsa_kernel {name}
  .amdhsa_next_free_vgpr {vgpr}
  .amdhsa_next_free_sgpr {sgpr}
  .amdhsa_accum_offset {(vgpr + 3) // 4 * 4}
  .amdhsa_group_segment_fixed_size 0
  .amdhsa_kernarg_size 64
  .amdhsa_user_sgpr_count 2
  .amdhsa_user_sgpr_kernarg_segment_ptr 1
  .amdhsa_system_sgpr_workgroup_id_x 1
.end_amdhsa_kernel
"""


def main():
    g = Gen()
    g.main_kernel()
    body = g.a.text()
    red = g.reduce_kernel()
    hdr = open(f"cdna_kernels/{NAME}.s.ref").read().split("; Override launch")[0]
    s = hdr
    s += f"; @launch kernel={NAME}_kernel grid=(256,1,1) block=(512,1,1) lds={LDS_BYTES}\n"
    s += "; @launch kernel=gqa_reduce_kernel grid=(256,1,1) block=(256,1,1) lds=0\n"
    s += '.amdgcn_target "amdgcn-amd-amdhsa--gfx950"\n.text\n'
    s += body + red
    s += '.section .rodata,"a"\n.p2align 6\n' + kd(f"{NAME}_kernel", 256) + ".p2align 6\n" + kd("gqa_reduce_kernel", 80, 48)
    open(OUT, "w").write(s)
    print("counts", g.a.count, "nop states", g.a.nops, file=sys.stderr)


main()
```

```python
import sys, math, struct
from asmlib import Asm, vr, sr

NAME = "standalone__gqa_block_cached__near_ridge"
PROFILE = "--profile" in sys.argv
OUT = sys.argv[1] if len(sys.argv) > 1 and not sys.argv[1].startswith("--") else f"cdna_kernels/{NAME}.s"


def opt(name, default):
    for a in sys.argv:
        if a.startswith(f"--{name}="):
            return int(a.split("=")[1])
    return default


SLOT = 17152
NSLOT = 9
WIN = 3 * SLOT
SMALL = NSLOT * SLOT
LDS_BYTES = 163840
D = opt("D", 6)
NF = opt("NF", 12)
THRESH = 0x53800000
FORCE_FB = opt("forcefb", 0)
ROT = opt("rot", 1)
SAMET = opt("samet", 0)
sROT = 70
NT = opt("nt", 1)
DBGPROF = opt("dbgprof", 0)
AMP = opt("amp", -1)
ABL = opt("abl", 0)

S_X, S_WQ, S_K, S_V, S_WO, S_WS = 20, 24, 28, 32, 36, 40
sW, sKH, sHH, sQH = 44, 45, 46, 47
sMX, sMV, sMQ, sMO = 48, 49, 50, 51
sPASS = 52
sT0, sT1, sT2, sT3 = 54, 55, 56, 57
sOFF = [60, 61]
sPROF = 64
sTS = 68

vLANE = 1
vX, vWQ, vK, vV, vWO = 2, 3, 4, 5, 6
vL16 = 7
vLS = [8, 9]
vT = [10, 11, 12, 13, 14, 15]
QF = 16
CI = 48
OA = 64
SB = [128, 144]
FB = 160
aKa, aKb, aVa, aVb = 208, 211, 214, 217
aW = 220
aX = 223
QA = 224
XB = 64
vMT = 0
assert FB + 4 * NF <= 208


def f32(x):
    return struct.unpack("<I", struct.pack("<f", x))[0]


class Unit:
    def __init__(self, kind, idx):
        self.kind, self.idx = kind, idx
        self.slot = None
        self.last_id = None
        self.visible = False
        self.reads = []
        self.freed = False

    def __repr__(self):
        return f"{self.kind}{self.idx}"


class Gen:
    def __init__(self):
        self.a = Asm()
        self.free = list(range(NSLOT))
        self.pending = []
        self.units = {}
        self.soff_i = 0
        self.issue_q = []
        self.prof_n = 0
        self.inloop = False

    def unit(self, kind, idx):
        return self.units[(kind, idx)]

    def piece_instrs(self, u, e):
        base = u.slot * SLOT
        k, i = u.kind, u.idx
        if k == "x":
            m0s, lds, so, voff, srd = sMX, base + e * 1040, i * 16384 + e * 1024, vX, S_X
        elif k == "wq":
            m0s, lds, so, voff, srd = sMQ, base + e * 4160, i * 32 * 8192 + e * 8192, vWQ, S_WQ
        elif k == "K":
            m0s, lds, so, voff, srd = sMX, base + e * 1040, i * 8192 + e * 256, vK, S_K
        elif k == "V":
            m0s, lds, so, voff, srd = sMV, base + e * 1088, i * 8192 + e * 256, vV, S_V
        elif k == "wo":
            m0s, lds, so, voff, srd = sMO, base + e * 1088, i * 16384 + e * 2048, vWO, S_WO
        s = sOFF[self.soff_i]
        self.soff_i ^= 1
        if k in ("K", "V") and SAMET:
            so = e * 256
        if k in ("K", "V") and ROT:
            return [f"s_add_u32 s{s}, s{sROT}, {so}", f"s_add_u32 m0, s{m0s}, {lds}", f"s_and_b32 s{s}, s{s}, 0x1ffff",
                    f"buffer_load_dwordx4 v{voff}, {sr(srd, 4)}, s{s} offen {'nt ' if NT else ''}lds"]
        return [f"s_add_u32 m0, s{m0s}, {lds}", f"s_mov_b32 s{s}, {so}",
                f"buffer_load_dwordx4 v{voff}, {sr(srd, 4)}, s{s} offen lds"]

    def emit_piece(self, u, e):
        if (ABL & 1) and self.inloop and u.kind in ("K", "V"):
            u.last_id = -1
            return
        ins = self.piece_instrs(u, e)
        for t in ins[:-1]:
            self.a.I(t)
        u.last_id = self.a.I(ins[-1])

    def assign(self, maxn=99):
        n = 0
        while self.free and self.pending and n < maxn:
            u = self.pending.pop(0)
            u.slot = self.free.pop(0)
            self.issue_q.append((u, 0))
            self.issue_q.append((u, 1))
            n += 1

    def drain_issue(self, n=99):
        while self.issue_q and n > 0:
            u, e = self.issue_q.pop(0)
            self.emit_piece(u, e)
            n -= 1

    def barrier(self, need=(), frees=(), keep=()):
        a = self.a
        for u in need:
            assert u.last_id is not None and not any(q[0] is u for q in self.issue_q), f"{u} not issued"
        if need:
            a.wait_vm_id(max(u.last_id for u in need))
        out = set(a.outstanding_ds())
        for u in list(frees) + list(keep):
            if any(r in out for r in u.reads):
                ids = a.outstanding_ds()
                last = max(ids.index(r) for r in u.reads if r in out)
                a.wait(lgkm=len(ids) - 1 - last)
                out = set(a.outstanding_ds())
        if not ((ABL & 2) and self.inloop):
            a.I("s_barrier")
        for u in need:
            u.visible = True
        for u in frees:
            u.freed = True
            self.free.append(u.slot)
        for u in keep:
            u.freed = True

    def lds_read(self, u, text_fn, off, areg, tag):
        assert u.visible and not u.freed, f"read of {u} vis={u.visible} freed={u.freed}"
        tot = u.slot * SLOT + off
        w = u.slot // 3
        imm = tot - w * WIN
        assert 0 <= imm < 65536
        if (ABL & 8) and self.inloop:
            x = self.a.decode(text_fn(areg + w, imm))
            for rg in x.vw:
                self.a.tags[rg] = tag
            return
        i = self.a.I(text_fn(areg + w, imm), tag=tag)
        u.reads.append(i)

    def prof(self, name):
        if not PROFILE:
            return
        a = self.a
        n = self.prof_n
        self.prof_n += 1
        a.wait(lgkm=0)
        a.I(f"s_memrealtime {sr(sTS, 2)}")
        a.I(f"s_memtime {sr(sTS + 4, 2)}")
        a.raw("    s_waitcnt lgkmcnt(0)")
        a.I(f"v_mov_b32 v{vT[5]}, s{sTS}")
        a.I(f"v_mov_b32 v{vT[4]}, {n * 4}")
        a.I(f"buffer_store_dword v{vT[5]}, v{vT[4]}, {sr(sPROF, 4)}, 0 offen")
        a.I(f"v_mov_b32 v{vT[5]}, s{sTS + 4}")
        a.I(f"buffer_store_dword v{vT[5]}, v{vT[4]}, {sr(sPROF, 4)}, 0 offen offset:128")

    def main_kernel(self):
        a = self.a
        I = a.I
        a.raw(f".globl {NAME}_kernel\n.p2align 8\n.type {NAME}_kernel,@function\n{NAME}_kernel:")
        I("s_cmp_ge_u32 s2, 256")
        I("s_cbranch_scc1 L_MAIN_END")
        I("s_load_dwordx16 s[4:19], s[0:1], 0")
        I("s_getpc_b64 s[58:59]")
        a.raw("L_PC:")
        I(f"v_and_b32 v{vLANE}, 63, v0")
        I(f"v_lshrrev_b32 v{vT[0]}, 6, v0")
        I(f"v_lshlrev_b32 v{vT[1]}, 6, v0")
        I(f"v_readfirstlane_b32 s{sW}, v{vT[0]}")
        I(f"v_min_u32 v{vT[1]}, L_RED_END-L_PC, v{vT[1]}")
        I(f"global_load_dword v{vT[2]}, v{vT[1]}, s[58:59]")
        I(f"s_lshr_b32 s{sKH}, s{sW}, 2")
        I(f"s_and_b32 s{sQH}, s{sW}, 1")
        I(f"s_lshr_b32 s{sHH}, s{sW}, 1")
        I(f"s_and_b32 s{sHH}, s{sHH}, 1")
        I(f"s_mul_i32 s{sMX}, s{sW}, 2080")
        I(f"s_lshr_b32 s{sT0}, s{sW}, 1")
        I(f"s_mul_i32 s{sMV}, s{sT0}, 4288")
        I(f"s_mul_i32 s{sT1}, s{sQH}, 2176")
        I(f"s_add_u32 s{sMV}, s{sMV}, s{sT1}")
        I(f"s_lshl_b32 s{sMQ}, s{sT0}, 10")
        I(f"s_mul_i32 s{sT1}, s{sQH}, 8320")
        I(f"s_add_u32 s{sMQ}, s{sMQ}, s{sT1}")
        I(f"s_mul_i32 s{sMO}, s{sW}, 2144")
        I(f"s_mov_b64 {sr(sPASS, 2)}, 0")
        I("s_and_b32 s62, s2, 7")
        I("s_lshr_b32 s63, s2, 3")
        I("s_and_b32 s63, s63, 1")
        I("s_lshr_b32 s3, s2, 4")
        I(f"s_lshl_b32 s{sROT}, s62, 1")
        I(f"s_add_u32 s{sROT}, s{sROT}, s3")
        I(f"s_and_b32 s{sROT}, s{sROT}, 15")
        I(f"s_lshl_b32 s{sROT}, s{sROT}, 13")
        L = vLANE
        t0, t1, t2, t3 = vT[0], vT[1], vT[3], vT[4]
        I(f"v_lshlrev_b32 v{vL16}, 4, v{L}")
        I(f"s_lshl_b32 s{sT1}, s{sW}, 11")
        I(f"v_add_u32 v{vX}, s{sT1}, v{vL16}")
        I(f"v_lshrrev_b32 v{t0}, 5, v{L}")
        I(f"v_lshlrev_b32 v{t0}, 15, v{t0}")
        I(f"v_and_b32 v{t1}, 31, v{L}")
        I(f"v_lshl_add_u32 v{t0}, v{t1}, 4, v{t0}")
        I(f"s_lshl_b32 s{sT1}, s{sT0}, 16")
        I(f"s_lshl_b32 s{sT2}, s{sQH}, 14")
        I(f"s_add_u32 s{sT1}, s{sT1}, s{sT2}")
        I(f"v_add_u32 v{vWQ}, s{sT1}, v{t0}")
        a.raw("    s_waitcnt lgkmcnt(0)")
        def srd(dst, ptr, off_s, size):
            I(f"s_add_u32 s{dst}, s{ptr}, s{off_s}")
            I(f"s_addc_u32 s{dst + 1}, s{ptr + 1}, 0")
            I(f"s_mov_b32 s{dst + 2}, {size}")
            I(f"s_mov_b32 s{dst + 3}, 0x00020000")
        I(f"s_lshl_b32 s{sT1}, s3, 16")
        srd(S_X, 4, sT1, 65536)
        I(f"s_lshl_b32 s{sT1}, s62, 10")
        I(f"s_lshl_b32 s{sT2}, s63, 9")
        I(f"s_add_u32 s{sT1}, s{sT1}, s{sT2}")
        srd(S_WQ, 10, sT1, 511 * 8192 + 512)
        order = [("x", i) for i in range(4)] + [("wq", i) for i in range(16)]
        order += [("K", 0)]
        for t in range(15):
            order += [("K", t + 1), ("V", t)]
        order += [("V", 15)]
        order += [("wo", i) for i in range(16)]
        for k, i in order:
            u = Unit(k, i)
            self.units[(k, i)] = u
            self.pending.append(u)
        self.assign()
        self.drain_issue()
        I(f"s_lshl_b32 s{sT1}, s3, 3")
        I(f"s_add_u32 s{sT1}, s{sT1}, s62")
        I(f"s_lshl_b32 s{sT1}, s{sT1}, 18")
        srd(S_K, 6, sT1, 262144)
        srd(S_V, 8, sT1, 262144)
        I(f"s_lshl_b32 s{sT1}, s62, 19")
        I(f"s_lshl_b32 s{sT2}, s63, 18")
        I(f"s_add_u32 s{sT1}, s{sT1}, s{sT2}")
        srd(S_WO, 12, sT1, 262144)
        I(f"s_lshl_b32 s{sT1}, s3, 4")
        I(f"s_lshl_b32 s{sT2}, s62, 1")
        I(f"s_add_u32 s{sT1}, s{sT1}, s{sT2}")
        I(f"s_add_u32 s{sT1}, s{sT1}, s63")
        I(f"s_lshl_b32 s{sT1}, s{sT1}, 16")
        srd(S_WS, 18, sT1, 65536)
        if PROFILE:
            I(f"s_lshl_b32 s{sT1}, s2, 3")
            I(f"s_add_u32 s{sT1}, s{sT1}, s{sW}")
            I(f"s_lshl_b32 s{sT1}, s{sT1}, 8")
            I(f"s_add_u32 s{sT1}, s{sT1}, 0x2000000")
            srd(sPROF, 18, sT1, 256)
            self.prof("start")
        I(f"v_lshrrev_b32 v{t0}, 5, v{L}")
        I(f"v_bfe_u32 v{t1}, v{L}, 4, 1")
        I(f"v_and_b32 v{t2}, 15, v{L}")
        I(f"v_lshlrev_b32 v{vK}, 17, v{t0}")
        I(f"v_lshl_add_u32 v{vK}, v{t1}, 12, v{vK}")
        I(f"v_lshl_add_u32 v{vK}, v{t2}, 4, v{vK}")
        I(f"s_lshl_b32 s{sT1}, s{sW}, 9")
        I(f"v_add_u32 v{vK}, s{sT1}, v{vK}")
        I(f"v_lshrrev_b32 v{t3}, 4, v{L}")
        I(f"v_lshlrev_b32 v{vV}, 10, v{t3}")
        I(f"v_lshl_add_u32 v{vV}, v{t2}, 4, v{vV}")
        I(f"s_lshl_b32 s{sT1}, s{sKH}, 17")
        I(f"s_lshl_b32 s{sT2}, s{sHH}, 12")
        I(f"s_add_u32 s{sT1}, s{sT1}, s{sT2}")
        I(f"s_lshl_b32 s{sT2}, s{sQH}, 9")
        I(f"s_add_u32 s{sT1}, s{sT1}, s{sT2}")
        I(f"v_add_u32 v{vV}, s{sT1}, v{vV}")
        I(f"v_lshlrev_b32 v{vWO}, 12, v{t3}")
        I(f"v_bfe_u32 v{t3}, v{L}, 3, 1")
        I(f"v_lshl_add_u32 v{vWO}, v{t3}, 10, v{vWO}")
        I(f"v_and_b32 v{t3}, 7, v{L}")
        I(f"v_lshl_add_u32 v{vWO}, v{t3}, 4, v{vWO}")
        I(f"s_lshl_b32 s{sT1}, s{sW}, 7")
        I(f"v_add_u32 v{vWO}, s{sT1}, v{vWO}")
        I(f"v_mul_u32_u24 v{aX}, 1040, v{t2}")
        I(f"v_lshl_add_u32 v{aX}, v{t0}, 4, v{aX}")
        I(f"v_lshl_add_u32 v{aKa}, v{t1}, 8, v{aX}")
        I(f"v_mul_u32_u24 v{t3}, {SLOT}, v{t1}")
        I(f"v_add_u32 v{aX}, v{aX}, v{t3}")
        I(f"s_mul_i32 s{sT1}, s{sQH}, {2 * SLOT}")
        I(f"v_add_u32 v{aX}, s{sT1}, v{aX}")
        I(f"s_mul_i32 s{sT1}, s{sKH}, 640")
        I(f"s_mul_i32 s{sT2}, s{sKH}, 384")
        I(f"s_add_u32 s{sT2}, s{sT2}, 128")
        I(f"v_add_u32 v{aKb}, s{sT2}, v{aKa}")
        I(f"v_add_u32 v{aKa}, s{sT1}, v{aKa}")
        trc = vT[5]
        I(f"v_and_b32 v{t3}, 1, v{L}")
        I(f"v_lshlrev_b32 v{trc}, 4, v{t3}")
        I(f"v_bfe_u32 v{t3}, v{L}, 1, 1")
        I(f"v_lshl_add_u32 v{trc}, v{t3}, 3, v{trc}")
        I(f"v_lshl_add_u32 v{trc}, v{t1}, 5, v{trc}")
        I(f"v_bfe_u32 v{t2}, v{L}, 2, 2")
        I(f"v_mul_u32_u24 v{aVa}, 1088, v{t2}")
        I(f"v_lshl_add_u32 v{aVa}, v{t0}, 8, v{aVa}")
        I(f"v_add_u32 v{aVa}, v{aVa}, v{trc}")
        I(f"s_mul_i32 s{sT1}, s{sKH}, {8576 + 128}")
        I(f"s_mul_i32 s{sT2}, s{sKH}, {8576 - 128}")
        I(f"s_add_u32 s{sT2}, s{sT2}, 128")
        I(f"v_add_u32 v{aVb}, s{sT2}, v{aVa}")
        I(f"v_add_u32 v{aVa}, s{sT1}, v{aVa}")
        I(f"v_mul_u32_u24 v{aW}, 4160, v{t2}")
        I(f"v_lshl_add_u32 v{aW}, v{t0}, 10, v{aW}")
        I(f"v_add_u32 v{aW}, v{aW}, v{trc}")
        I(f"s_lshl_b32 s{sT1}, s{sHH}, 8")
        I(f"s_lshl_b32 s{sT2}, s{sKH}, 7")
        I(f"s_add_u32 s{sT1}, s{sT1}, s{sT2}")
        I(f"v_add_u32 v{aW}, s{sT1}, v{aW}")
        for base in (aKa, aKb, aVa, aVb, aW):
            I(f"v_add_u32 v{base + 1}, {WIN}, v{base}")
            I(f"v_add_u32 v{base + 2}, {2 * WIN}, v{base}")
        aWO0 = vT[2]
        I(f"v_lshrrev_b32 v{t3}, 1, v{t2}")
        I(f"v_mul_u32_u24 v{aWO0}, 1088, v{t3}")
        I(f"v_lshl_add_u32 v{aWO0}, v{t0}, 9, v{aWO0}")
        I(f"v_and_b32 v{t3}, 1, v{t2}")
        I(f"v_lshl_add_u32 v{aWO0}, v{t3}, 7, v{aWO0}")
        I(f"v_add_u32 v{aWO0}, v{aWO0}, v{trc}")
        I(f"v_add_u32 v{aWO0}, s{sMO}, v{aWO0}")
        self.aWO0 = aWO0

        self.phase1()
        self.attention()
        self.phase3()
        a.raw("L_MAIN_END:")
        a.raw("    s_endpgm")
        self.fallback()

    def phase1(self):
        a = self.a
        I = a.I
        U = self.unit
        xs = [U("x", i) for i in range(4)]
        assert [u.slot for u in xs] == [0, 1, 2, 3]
        self.barrier(need=xs + [U("wq", 0)])
        self.prof("x+wq0 landed")

        def xread(s):
            i = I(f"ds_read_b128 {vr(XB + 4 * s, 4)}, v{aX} offset:{32 * s}", tag=("x", s))
            for u in xs:
                u.reads.append(i)

        def wqread(i):
            u = U("wq", i)
            for s2 in range(2):
                for dt2 in range(2):
                    reg = QF + (i % 2) * 16 + (s2 * 2 + dt2) * 4
                    for jj in range(2):
                        self.lds_read(u, lambda ar, imm: f"ds_read_b64_tr_b16 {vr(reg + 2 * jj, 2)}, v{ar} offset:{imm}",
                                      (4 * s2 + jj) * 512 + dt2 * 64, aW, ("wq", i, s2, dt2))

        def mm(i):
            for s2 in range(2):
                for dt2 in range(2):
                    reg = QF + (i % 2) * 16 + (s2 * 2 + dt2) * 4
                    s = 2 * i + s2
                    acc = vr(QA + 16 * dt2, 16)
                    I(f"v_mfma_f32_32x32x16_bf16 {acc}, {vr(reg, 4)}, {vr(XB + 4 * s, 4)}, {acc if s else 0}",
                      expect={reg: ("wq", i, s2, dt2), XB + 4 * s: ("x", s)})
                    self.drain_issue(1)

        self.qx = []
        for i in range(16):
            wqread(i)
            if i < 4:
                for s in range(8 * i, 8 * i + 8):
                    xread(s)
            if i > 0:
                mm(i - 1)
            self.drain_issue()
            if i < 15:
                frees = [U("wq", i)] + (xs if i == 3 else [])
                if i in (13, 14):
                    self.barrier(need=[U("wq", i + 1)], keep=[U("wq", i)])
                    self.qx.append(U("wq", i).slot)
                else:
                    self.barrier(need=[U("wq", i + 1)], frees=frees)
                self.assign()
        mm(15)
        self.prof("qproj done")
        c = math.log2(math.e) / math.sqrt(128.0)
        I(f"s_mov_b32 s{sT0}, {f32(c):#x}")
        I(f"s_cmp_eq_u32 s{sKH}, 0")
        I(f"s_cselect_b32 s{sT1}, {self.qx[0]}, {self.qx[1]}")
        I(f"s_cselect_b32 s{sT2}, {self.qx[1]}, {self.qx[0]}")
        I(f"s_mul_i32 s{sT1}, s{sT1}, {SLOT}")
        I(f"s_mul_i32 s{sT2}, s{sT2}, {SLOT}")
        I(f"s_and_b32 s{sT3}, s{sW}, 3")
        I(f"s_lshl_b32 s{sT3}, s{sT3}, 12")
        I(f"s_add_u32 s{sT1}, s{sT1}, s{sT3}")
        I(f"s_add_u32 s{sT2}, s{sT2}, s{sT3}")
        I(f"v_add_u32 v{vT[0]}, s{sT1}, v{vL16}")
        I(f"v_add_u32 v{vT[1]}, s{sT2}, v{vL16}")
        for f in range(4):
            for j in range(8):
                r = QA + 8 * f + j
                I(f"v_mul_f32 v{r}, s{sT0}, v{r}")
            for j in range(4):
                r = QA + 8 * f + 2 * j
                I(f"v_cvt_pk_bf16_f32 v{QF + 4 * f + j}, v{r}, v{r + 1}", tag=("Q", f))
            I(f"ds_write_b128 v{vT[0]}, {vr(QF + 4 * f, 4)} offset:{1024 * f}")
        a.wait(lgkm=0)
        self.barrier(need=[U("K", 0)], frees=[U("wq", 15)])
        self.assign()
        for f in range(4):
            I(f"ds_read_b128 {vr(QF + 16 + 4 * f, 4)}, v{vT[1]} offset:{1024 * f}", tag=("Q", 4 + f))
        self.drain_issue()
        a.wait(lgkm=0)
        self.fb_units = [u for u in self.units.values() if u.kind in ("K", "V") and u.last_id is not None]
        self.fb_slots = {(u.kind, u.idx): u.slot for u in self.fb_units}

    def kread(self, t, s, fb):
        u = self.unit("K", t)
        reg = FB + 4 * fb
        self.lds_read(u, lambda ar, imm: f"ds_read_b128 {vr(reg, 4)}, v{ar} offset:{imm}",
                      32 * (s & 3), aKa if s < 4 else aKb, ("K", t, s))

    def vread(self, t, ks, j, fb):
        u = self.unit("V", t)
        reg = FB + 4 * fb
        for jj in range(2):
            self.lds_read(u, lambda ar, imm: f"ds_read_b64_tr_b16 {vr(reg + 2 * jj, 2)}, v{ar} offset:{imm}",
                          ks * 4288 + jj * 512 + (j & 1) * 64, aVa if j < 2 else aVb, ("V", t, ks, j))

    def attention(self):
        a = self.a
        I = a.I
        U = self.unit
        a.raw("L_ATTN:")
        a.I("s_nop 7")
        I(f"v_mov_b32 v{vLS[0]}, 0")
        I(f"v_mov_b32 v{vLS[1]}, 0")
        for s in range(8):
            self.kread(0, s, s)
        S0 = SB[0]
        for s in range(8):
            I(f"v_mfma_f32_32x32x16_bf16 {vr(S0, 16)}, {vr(FB + 4 * s, 4)}, {vr(QF + 4 * s, 4)}, {vr(S0, 16) if s else 0}",
              expect={FB + 4 * s: ("K", 0, s), QF + 4 * s: ("Q", s)})
        qxu = []
        for sl in self.qx:
            u = Unit("qx", sl)
            u.slot = sl
            qxu.append(u)
        self.barrier(need=[U("K", 1), U("V", 0)], frees=[U("K", 0)] + qxu)
        self.assign()

        seq = []
        for t in range(16):
            if t < 15:
                seq += [("QK", t + 1, s) for s in range(8)]
            seq += [("PV", t, ks, j) for ks in range(2) for j in range(4)]
        n = len(seq)
        pos_qk0 = {op[1]: g for g, op in enumerate(seq) if op[0] == "QK" and op[2] == 0}
        pos_pv0 = {op[1]: g for g, op in enumerate(seq) if op[0] == "PV" and op[2] == 0 and op[3] == 0}
        fill = {g: [] for g in range(-1, n + 1)}

        def read_for(g):
            op = seq[g]
            if op[0] == "QK":
                self.kread(op[1], op[2], g % NF)
            else:
                self.vread(op[1], op[2], op[3], g % NF)

        def sm_a(t, i):
            S = SB[t % 2]
            def f():
                if ABL & 4:
                    return
                if t == 0:
                    I(f"v_add_f32 v{S + 2 * i}, v{CI}, v{S + 2 * i}")
                    I(f"v_add_f32 v{S + 2 * i + 1}, v{CI}, v{S + 2 * i + 1}")
                I(f"v_exp_f32 v{S + 2 * i}, v{S + 2 * i}")
                I(f"v_exp_f32 v{S + 2 * i + 1}, v{S + 2 * i + 1}")
            return f

        def sm_b(t, i):
            S = SB[t % 2]
            def f():
                if ABL & 4:
                    a.tags[S + i] = ("P", t, i)
                    return
                I(f"v_add_f32 v{vLS[0]}, v{vLS[0]}, v{S + 2 * i}")
                I(f"v_add_f32 v{vLS[1]}, v{vLS[1]}, v{S + 2 * i + 1}")
                I(f"v_cvt_pk_bf16_f32 v{S + i}, v{S + 2 * i}, v{S + 2 * i + 1}", tag=("P", t, i))
            return f

        for t in range(16):
            if t == 0:
                for i in range(8):
                    g = i if i < 4 else i + 2
                    fill[g - 1].append(sm_a(t, i))
                    fill[g].append(sm_b(t, i))
            elif t < 15:
                start = pos_qk0[t] + 8 + 2
                for i in range(8):
                    fill[start + 2 * i].append(sm_a(t, i))
                    fill[start + 2 * i + 1].append(sm_b(t, i))
            else:
                start = pos_qk0[t] + 8 + 2
                for i in range(8):
                    fill[start + i].append(sm_a(t, i))
                    fill[start + i + 1].append(sm_b(t, i))
        bar_at = {}
        for t in range(1, 17):
            g_first = pos_pv0[t - 1] + 8
            bar_at[g_first - D] = t
        self.ex_slots = []

        for g in range(D):
            read_for(g)
        self.drain_issue()
        m = vT[0]
        I(f"v_max3_f32 v{m}, v{S0}, v{S0 + 1}, v{S0 + 2}")
        for k in range(3, 15, 2):
            I(f"v_max3_f32 v{m}, v{m}, v{S0 + k}, v{S0 + k + 1}")
        I(f"v_max_f32 v{m}, v{m}, v{S0 + 15}")
        I(f"v_mov_b32 v{vT[1]}, v{m}")
        I(f"v_permlane32_swap_b32 v{m}, v{vT[1]}")
        I(f"v_max_f32 v{m}, v{m}, v{vT[1]}")
        I(f"v_cndmask_b32 v{m}, v{m}, v{vMT}, {sr(sPASS, 2)}")
        for k in range(16):
            I(f"v_sub_f32 v{CI + k}, 0, v{m}")
        for f in fill[-1]:
            f()
        self.prof("loop start")
        self.inloop = True
        for g, op in enumerate(seq):
            if g in bar_at:
                t = bar_at[g]
                need = [U(k, i) for k, i in (("K", t + 1), ("V", t)) if (k, i) in self.units]
                rel = [U(k, i) for k, i in (("K", t), ("V", t - 2)) if (k, i) in self.units]
                nkeep = {14: 1, 15: 2, 16: 1}.get(t, 0)
                keep = rel[:nkeep]
                self.barrier(need=need, frees=rel[nkeep:], keep=keep)
                self.ex_slots += [u.slot for u in keep]
                self.assign()
            if g + D < n:
                read_for(g + D)
            fb = FB + 4 * (g % NF)
            if op[0] == "QK":
                t, s = op[1], op[2]
                S = SB[t % 2]
                I(f"v_mfma_f32_32x32x16_bf16 {vr(S, 16)}, {vr(fb, 4)}, {vr(QF + 4 * s, 4)}, {vr(S, 16) if s else vr(CI, 16)}",
                  expect={fb: ("K", t, s)})
            else:
                t, ks, j = op[1:]
                S = SB[t % 2]
                acc = vr(OA + 16 * j, 16)
                I(f"v_mfma_f32_32x32x16_bf16 {acc}, {vr(fb, 4)}, {vr(S + 4 * ks, 4)}, {acc if (t or ks) else 0}",
                  expect={fb: ("V", t, ks, j), S + 4 * ks: ("P", t, 4 * ks), S + 4 * ks + 3: ("P", t, 4 * ks + 3)})
            for f in fill[g]:
                f()
            self.drain_issue(1)
        self.drain_issue()
        self.inloop = False
        self.prof("attn done")

        l = vLS[0]
        I(f"v_add_f32 v{l}, v{vLS[0]}, v{vLS[1]}")
        I(f"v_mov_b32 v{vLS[1]}, v{l}")
        I(f"v_permlane32_swap_b32 v{l}, v{vLS[1]}")
        I(f"v_add_f32 v{l}, v{l}, v{vLS[1]}")
        I(f"v_mov_b32 v{vLS[1]}, v{CI}")
        I(f"s_mov_b32 s{sT0}, {THRESH if not FORCE_FB else 0:#x}")
        I(f"v_cmp_nge_f32 vcc, s{sT0}, v{l}")
        I(f"v_cndmask_b32 v{vT[0]}, 0, 1, vcc")
        I(f"s_lshl_b32 s{sT1}, s{sW}, 9")
        I(f"s_add_u32 s{sT1}, s{sT1}, {SMALL}")
        I(f"v_lshlrev_b32 v{vT[1]}, 3, v{vLANE}")
        I(f"v_add_u32 v{vT[3]}, s{sT1}, v{vT[1]}")
        I(f"ds_write_b64 v{vT[3]}, {vr(vLS[0], 2)}")
        I(f"s_xor_b32 s{sT1}, s{sW}, 4")
        I(f"s_lshl_b32 s{sT1}, s{sT1}, 9")
        I(f"s_add_u32 s{sT1}, s{sT1}, {SMALL}")
        I(f"v_add_u32 v{vT[3]}, s{sT1}, v{vT[1]}")
        I(f"s_lshl_b32 s{sT1}, s{sW}, 8")
        I(f"s_add_u32 s{sT1}, s{sT1}, {SMALL + 4096}")
        I(f"v_lshlrev_b32 v{vT[1]}, 2, v{vLANE}")
        I(f"v_add_u32 v{vT[1]}, s{sT1}, v{vT[1]}")
        I(f"ds_write_b32 v{vT[1]}, v{vT[0]}")
        ex = self.ex_slots
        assert len(ex) == 4
        I(f"s_cmp_eq_u32 s{sHH}, 0")
        I(f"s_cselect_b32 s{sT0}, {ex[0]}, {ex[1]}")
        I(f"s_cselect_b32 s{sT1}, {ex[2]}, {ex[3]}")
        I(f"s_mul_i32 s{sT0}, s{sT0}, {SLOT}")
        I(f"s_mul_i32 s{sT1}, s{sT1}, {SLOT}")
        I(f"s_lshl_b32 s{sT2}, s{sQH}, 13")
        I(f"s_add_u32 s{sT0}, s{sT0}, s{sT2}")
        I(f"s_add_u32 s{sT1}, s{sT1}, s{sT2}")
        I(f"s_cmp_eq_u32 s{sKH}, 0")
        I(f"s_cselect_b32 s{sT2}, s{sT0}, s{sT1}")
        I(f"s_cselect_b32 s{sT3}, s{sT1}, s{sT0}")
        I(f"v_add_u32 v{vT[0]}, s{sT2}, v{vL16}")
        I(f"v_add_u32 v{vT[1]}, s{sT3}, v{vL16}")
        for k in range(8):
            I(f"ds_write_b128 v{vT[1]}, {vr(OA + 32 + 4 * k, 4)} offset:{1024 * k}")
        a.wait(lgkm=0)
        self.barrier(frees=[U("V", 15)])
        self.assign()
        I(f"v_lshlrev_b32 v{vT[1]}, 5, v{vLANE}")
        I(f"v_add_u32 v{vT[1]}, {SMALL + 4096}, v{vT[1]}")
        I(f"ds_read_b128 {vr(SB[0], 4)}, v{vT[1]}")
        I(f"ds_read_b128 {vr(SB[0] + 4, 4)}, v{vT[1]} offset:16")
        I(f"ds_read_b64 {vr(vT[4], 2)}, v{vT[3]}")
        for k in range(8):
            I(f"ds_read_b128 {vr(QA + 4 * k, 4)}, v{vT[0]} offset:{1024 * k}")
        self.drain_issue()
        S = SB[0]
        I(f"v_or3_b32 v{S}, v{S}, v{S + 1}, v{S + 2}")
        I(f"v_or3_b32 v{S}, v{S}, v{S + 3}, v{S + 4}")
        I(f"v_or3_b32 v{S}, v{S}, v{S + 5}, v{S + 6}")
        I(f"v_or_b32 v{S}, v{S}, v{S + 7}")
        I(f"v_cmp_ne_u32 vcc, 0, v{S}")
        I(f"s_andn2_b64 vcc, vcc, {sr(sPASS, 2)}")
        I(f"s_cmp_lg_u64 vcc, 0")
        I(f"s_cbranch_scc1 L_FALLBACK")
        lo, co, lp, cp = vLS[0], vLS[1], vT[4], vT[5]
        mn, fo, fp = SB[1], SB[1] + 1, SB[1] + 2
        I(f"v_min_f32 v{mn}, v{co}, v{cp}")
        I(f"v_sub_f32 v{fo}, v{mn}, v{co}")
        I(f"v_sub_f32 v{fp}, v{mn}, v{cp}")
        I(f"v_exp_f32 v{fo}, v{fo}")
        I(f"v_exp_f32 v{fp}, v{fp}")
        I(f"v_mul_f32 v{mn}, v{lo}, v{fo}")
        I(f"v_fmac_f32 v{mn}, v{lp}, v{fp}")
        I(f"v_rcp_f32 v{mn}, v{mn}")
        I(f"v_mul_f32 v{fo}, v{fo}, v{mn}")
        I(f"v_mul_f32 v{fp}, v{fp}, v{mn}")
        for f in range(4):
            for j in range(8):
                r = 8 * f + j
                I(f"v_mul_f32 v{OA + r}, v{OA + r}, v{fo}")
                I(f"v_fmac_f32 v{OA + r}, v{QA + r}, v{fp}")
            for j in range(4):
                r = OA + 8 * f + 2 * j
                I(f"v_cvt_pk_bf16_f32 v{QF + 4 * f + j}, v{r}, v{r + 1}")
        a.wait(lgkm=0)
        for f in range(4):
            I(f"ds_write_b128 v{vT[0]}, {vr(QF + 4 * f, 4)} offset:{1024 * f}")
        I(f"v_mov_b32 v{aW}, v{self.aWO0}")
        I(f"v_add_u32 v{aW + 1}, {WIN}, v{aW}")
        I(f"v_add_u32 v{aW + 2}, {2 * WIN}, v{aW}")
        I(f"v_mov_b32 v{aKa}, v{vL16}")
        I(f"v_add_u32 v{aKa + 1}, {WIN}, v{vL16}")
        I(f"v_add_u32 v{aKa + 2}, {2 * WIN}, v{vL16}")
        a.wait(lgkm=0)
        self.barrier()
        self.prof("exchange done")

    def phase3(self):
        a = self.a
        I = a.I
        U = self.unit
        ex = self.ex_slots
        NB = 4

        def reads(k):
            u = U("wo", k)
            a.wait_vm_id(u.last_id)
            u.visible = True
            hh, kh, i = k >> 3, (k >> 2) & 1, k & 3
            for qt in range(2):
                tot = ex[2 * kh + hh] * SLOT + qt * 8192 + i * 1024
                w = tot // WIN
                I(f"ds_read_b128 {vr(128 + (k % NB) * 8 + 4 * qt, 4)}, v{aKa + w} offset:{tot - w * WIN}", tag=("O", k, qt))
            for nt in range(2):
                reg = FB + (k % NB) * 8 + 4 * nt
                for jj in range(2):
                    self.lds_read(u, lambda ar, imm: f"ds_read_b64_tr_b16 {vr(reg + 2 * jj, 2)}, v{ar} offset:{imm}",
                                  jj * 256 + nt * 64, aW, ("wo", k, nt))

        PD = 2
        for k in range(PD):
            reads(k)
        for k in range(16):
            if k + PD < 16:
                reads(k + PD)
            for nt in range(2):
                for qt in range(2):
                    acc = vr(OA + 16 * (2 * nt + qt), 16)
                    ra = FB + (k % NB) * 8 + 4 * nt
                    rb = 128 + (k % NB) * 8 + 4 * qt
                    I(f"v_mfma_f32_32x32x16_bf16 {acc}, {vr(ra, 4)}, {vr(rb, 4)}, {acc if k else 0}",
                      expect={ra: ("wo", k, nt), rb: ("O", k, qt)})
            u = U("wo", k)
            assert not any(r in a.outstanding_ds() for r in u.reads)
            u.freed = True
            self.free.append(u.slot)
            self.assign()
            self.drain_issue()
        self.prof("oproj done")
        I(f"s_lshl_b32 s{sT0}, s{sW}, 13")
        for tile in range(4):
            for s in range(2):
                dst = QF + (tile * 2 + s) * 4
                for j in range(4):
                    r = OA + 16 * tile + 8 * s + 2 * j
                    I(f"v_cvt_pk_bf16_f32 v{dst + j}, v{r}, v{r + 1}")
                off = tile * 2048 + s * 1024
                if off >= 4096:
                    if off == 4096:
                        I(f"s_add_u32 s{sT0}, s{sT0}, 4096")
                    off -= 4096
                I(f"buffer_store_dwordx4 {vr(dst, 4)}, v{vL16}, {sr(S_WS, 4)}, s{sT0} offen offset:{off}")
        if PROFILE:
            a.wait(vm=0)
            self.prof("end")

    def fallback(self):
        a = self.a
        a.reset_state()
        I = a.I
        a.raw("L_FALLBACK:")
        a.raw("    s_waitcnt vmcnt(0) lgkmcnt(0)")
        I("s_nop 15")
        I("s_barrier")
        for u in self.fb_units:
            u.slot = self.fb_slots[(u.kind, u.idx)]
            self.emit_piece(u, 0)
            self.emit_piece(u, 1)
        t0, t1 = vT[0], vT[1]
        I(f"v_and_b32 v{t0}, 31, v{vLANE}")
        I(f"v_lshlrev_b32 v{t0}, 8, v{t0}")
        I(f"v_lshrrev_b32 v{t1}, 5, v{vLANE}")
        I(f"v_lshl_add_u32 v{t0}, v{t1}, 4, v{t0}")
        I(f"s_mul_i32 s{sT0}, s{sKH}, {131072 + 128}")
        I(f"s_mul_i32 s{sT1}, s{sKH}, {131072 - 128}")
        I(f"s_add_u32 s{sT1}, s{sT1}, 128")
        I(f"v_add_u32 v{t1}, s{sT1}, v{t0}")
        I(f"v_add_u32 v{t0}, s{sT0}, v{t0}")
        I(f"v_mov_b32 v{vMT}, 0xff800000")
        I(f"s_mov_b32 s{sT2}, 0")
        a.raw("L_FB_LOOP:")
        for s in range(8):
            I(f"buffer_load_dwordx4 {vr(FB + 4 * s, 4)}, v{t0 if s < 4 else t1}, {sr(S_K, 4)}, s{sT2} offen offset:{32 * (s & 3)}")
        S = SB[0]
        for s in range(8):
            I(f"v_mfma_f32_32x32x16_bf16 {vr(S, 16)}, {vr(FB + 4 * s, 4)}, {vr(QF + 4 * s, 4)}, {vr(S, 16) if s else 0}")
        for k in range(0, 16, 2):
            I(f"v_max3_f32 v{vMT}, v{vMT}, v{S + k}, v{S + k + 1}")
        I(f"s_add_u32 s{sT2}, s{sT2}, 8192")
        I(f"s_cmp_lt_u32 s{sT2}, 131072")
        I("s_nop 7")
        I("s_cbranch_scc1 L_FB_LOOP")
        I(f"v_mov_b32 v{t1}, v{vMT}")
        I(f"v_permlane32_swap_b32 v{vMT}, v{t1}")
        I(f"v_max_f32 v{vMT}, v{vMT}, v{t1}")
        I(f"s_mov_b64 {sr(sPASS, 2)}, -1")
        a.raw("    s_waitcnt vmcnt(0) lgkmcnt(0)")
        I("s_barrier")
        I("s_branch L_ATTN")

    def reduce_kernel(self):
        a = Asm()
        I = a.I
        a.raw(".globl gqa_reduce_kernel\n.p2align 8\n.type gqa_reduce_kernel,@function\ngqa_reduce_kernel:")
        I("s_cmp_ge_u32 s2, 256")
        I("s_cbranch_scc1 L_RED_END")
        I("s_load_dwordx2 s[4:5], s[0:1], 40")
        I("s_load_dwordx2 s[6:7], s[0:1], 56")
        I("s_lshr_b32 s3, s2, 4")
        I("s_and_b32 s16, s2, 15")
        I("v_lshlrev_b32 v1, 4, v0")
        I("s_lshl_b32 s17, s16, 12")
        I("v_add_u32 v1, s17, v1")
        a.raw("    s_waitcnt lgkmcnt(0)")
        I("s_lshl_b32 s17, s3, 20")
        I("s_add_u32 s8, s6, s17")
        I("s_addc_u32 s9, s7, 0")
        I("s_mov_b32 s10, 0x100000")
        I("s_mov_b32 s11, 0x00020000")
        for j in range(16):
            I(f"s_mov_b32 s{20 + j}, {j * 65536}")
        for j in range(16):
            I(f"buffer_load_dwordx4 {vr(8 + 4 * j, 4)}, v1, s[8:11], s{20 + j} offen")
        I("s_lshl_b32 s17, s3, 16")
        I("s_add_u32 s12, s4, s17")
        I("s_addc_u32 s13, s5, 0")
        I("s_mov_b32 s14, 0x10000")
        I("s_mov_b32 s15, 0x00020000")
        I("v_and_b32 v2, 31, v0")
        I("v_bfe_u32 v3, v0, 7, 1")
        I("v_lshl_add_u32 v2, v3, 5, v2")
        I("v_lshlrev_b32 v2, 10, v2")
        I("v_bfe_u32 v3, v0, 5, 2")
        I("v_lshl_add_u32 v2, v3, 4, v2")
        I("s_lshl_b32 s17, s16, 6")
        I("v_add_u32 v2, s17, v2")
        I("s_mov_b32 s18, 0xffff0000")
        acc = 72
        for j in range(16):
            for k in range(4):
                r = 8 + 4 * j + k
                if j == 0:
                    I(f"v_lshlrev_b32 v{acc + 2 * k}, 16, v{r}")
                    I(f"v_and_b32 v{acc + 2 * k + 1}, s18, v{r}")
                else:
                    I(f"v_lshlrev_b32 v4, 16, v{r}")
                    I(f"v_and_b32 v5, s18, v{r}")
                    I(f"v_add_f32 v{acc + 2 * k}, v{acc + 2 * k}, v4")
                    I(f"v_add_f32 v{acc + 2 * k + 1}, v{acc + 2 * k + 1}, v5")
        for k in range(4):
            I(f"v_cvt_pk_bf16_f32 v{4 + k}, v{acc + 2 * k}, v{acc + 2 * k + 1}")
        I("buffer_store_dwordx4 v[4:7], v2, s[12:15], 0 offen")
        if DBGPROF:
            I("s_cmp_lg_u32 s2, 0")
            I("s_cbranch_scc1 L_RED_END")
            I("s_load_dwordx2 s[40:41], s[0:1], 48")
            I("s_memrealtime s[42:43]")
            a.raw("    s_waitcnt lgkmcnt(0)")
            I("s_add_u32 s36, s6, 0x2000000")
            I("s_addc_u32 s37, s7, 0")
            I("s_mov_b32 s38, 0x100000")
            I("s_mov_b32 s39, 0x00020000")
            I("s_mov_b32 s44, s40")
            I("s_mov_b32 s45, s41")
            I("s_mov_b32 s46, 64")
            I("s_mov_b32 s47, 0x00020000")
            I("v_and_b32 v1, 7, v0")
            I("v_lshlrev_b32 v1, 2, v1")
            I("v_bfe_u32 v3, v0, 3, 1")
            I(f"v_mul_u32_u24 v3, {(133 * 8 + 7) * 256}, v3")
            I("v_add_u32 v1, v1, v3")
            I("buffer_load_dword v4, v1, s[36:39], 0 offen")
            I("v_mov_b32 v5, s42")
            I("v_cmp_eq_u32 vcc, 8, v0")
            I("v_cndmask_b32 v4, v4, v5, vcc")
            I("v_lshlrev_b32 v1, 2, v0")
            I("buffer_store_dword v4, v1, s[44:47], 0 offen")
            if AMP >= 0:
                I("v_readlane_b32 s50, v4, 0")
                I(f"v_readlane_b32 s51, v4, {AMP}")
                I("s_sub_u32 s51, s51, s50")
                I("s_lshl_b32 s51, s51, 2")
                I("s_min_u32 s51, s51, 100000")
                a.raw("L_SPIN:")
                I("s_memrealtime s[52:53]")
                a.raw("    s_waitcnt lgkmcnt(0)")
                I("s_sub_u32 s52, s52, s42")
                I("s_cmp_lt_u32 s52, s51")
                I("s_cbranch_scc1 L_SPIN")
        a.raw("L_RED_END:")
        a.raw("    s_endpgm")
        return a.text()


def kd(name, vgpr, sgpr=102):
    return f""".amdhsa_kernel {name}
  .amdhsa_next_free_vgpr {vgpr}
  .amdhsa_next_free_sgpr {sgpr}
  .amdhsa_accum_offset {(vgpr + 3) // 4 * 4}
  .amdhsa_group_segment_fixed_size 0
  .amdhsa_kernarg_size 64
  .amdhsa_user_sgpr_count 2
  .amdhsa_user_sgpr_kernarg_segment_ptr 1
  .amdhsa_system_sgpr_workgroup_id_x 1
.end_amdhsa_kernel
"""


def main():
    g = Gen()
    g.main_kernel()
    body = g.a.text()
    red = g.reduce_kernel()
    hdr = open(f"cdna_kernels/{NAME}.s.ref").read().split("; Override launch")[0]
    s = hdr
    s += f"; @launch kernel={NAME}_kernel grid=(256,1,1) block=(512,1,1) lds={LDS_BYTES}\n"
    s += "; @launch kernel=gqa_reduce_kernel grid=(256,1,1) block=(256,1,1) lds=0\n"
    s += '.amdgcn_target "amdgcn-amd-amdhsa--gfx950"\n.text\n'
    s += body + red
    s += '.section .rodata,"a"\n.p2align 6\n' + kd(f"{NAME}_kernel", 256) + ".p2align 6\n" + kd("gqa_reduce_kernel", 80, 64)
    open(OUT, "w").write(s)
    print("counts", g.a.count, "nop states", g.a.nops, file=sys.stderr)


main()
```

```python
import sys, math, struct
from asmlib import Asm, vr, sr

NAME = "standalone__gqa_block_cached__near_ridge"
PROFILE = "--profile" in sys.argv
OUT = sys.argv[1] if len(sys.argv) > 1 and not sys.argv[1].startswith("--") else f"cdna_kernels/{NAME}.s"


def opt(name, default):
    for a in sys.argv:
        if a.startswith(f"--{name}="):
            return int(a.split("=")[1])
    return default


SLOT = 17152
NSLOT = 9
WIN = 3 * SLOT
SMALL = NSLOT * SLOT
LDS_BYTES = 163840
D = opt("D", 6)
NF = opt("NF", 10)
THRESH = 0x53800000
FORCE_FB = opt("forcefb", 0)
NT = opt("nt", 1)
NTW = opt("ntw", 0)
NTX = opt("ntx", 0)
NTO = opt("nto", 0)
NTS = opt("nts", 0)
NTR = opt("ntr", 0)
KVEARLY = opt("kvearly", 10)
WOPF = opt("wopf", -1)
P1G = opt("p1g", 2)
DBGPROF = opt("dbgprof", 0)
AMP = opt("amp", -1)
PRIO = opt("prio", 0)
TOUCH0 = opt("touch0", 3)
NTOUCH = opt("ntouch", 0)
TPOS = opt("tpos", -1)
S_T = 76
SAMET = opt("samet", 0)
LPROF = opt("lprof", 0)
P1PROF = opt("p1prof", 0)
WONT = opt("wont", 0)
WINDOW = opt("window", 4)
P1GAP = opt("p1gap", 2)
K0FIRST = opt("k0first", 0)
PPROF = opt("pprof", 0)
TLBW = opt("tlbw", 1)
WOROT = opt("worot", 1)
sWA, sWB = 76, 77
IGAP = opt("igap", 3)
XORHP = opt("xorhp", 0)
K1POS = opt("k1pos", 15)
NLATE = opt("nlate", 2)
sROTo = 75

S_X, S_WQ, S_K, S_V, S_WO, S_WS = 20, 24, 28, 32, 36, 40
sW, sKH, sHH, sQH = 44, 45, 46, 47
sMX, sMV, sMQ, sMO = 48, 49, 50, 51
sPASS = 52
sT0, sT1, sT2, sT3 = 54, 55, 56, 57
sOFF = [60, 61]
sHKV, sHP, sB = 62, 63, 3
sPROF = 64
sTS = 68
sROT, sWROT = 70, 71
sQC = 74

vMT = 0
vLANE = 1
vTCH, vWQ, vK, vV, vWO = 2, 3, 4, 5, 6
vL16 = 7
vLS = [8, 9]
vT = [10, 11, 12, 13, 14, 15]
QF = 16
CI = 48
OA = 64
SB = [128, 144]
FB = 160
aE = 200
aKa, aKb, aVa, aVb = 208, 211, 214, 217
aW = 220
aWO0 = 223
QA = 224
assert FB + 4 * NF <= 200
aXw = aE
vXa = aE + 4


def xreg(s):
    if s < 24:
        return 64 + 4 * s
    if s < 28:
        return CI + 4 * (s - 24)
    return QF + 16 + 4 * (s - 28)


def f32(x):
    return struct.unpack("<I", struct.pack("<f", x))[0]


class Unit:
    def __init__(self, kind, idx):
        self.kind, self.idx = kind, idx
        self.slot = None
        self.last_id = None
        self.visible = False
        self.reads = []
        self.total = {"x": 8, "wq": 8, "K": 8, "V": 16, "wo": 4}[kind]
        self.freed = False

    def __repr__(self):
        return f"{self.kind}{self.idx}"


class Op:
    def __init__(self, key, text_fn, reads):
        self.key = key
        self.text_fn = text_fn
        self.reads = reads
        self.pre = []
        self.post = []
        self.rdpos = None


class Gen:
    def __init__(self):
        self.a = Asm()
        self.free = list(range(NSLOT))
        self.pending = []
        self.units = {}
        self.soff_i = 0
        self.issue_q = []
        self.prof_n = 0
        self.reserve = 0
        self.since = 99
        self.reserved = []

    def U(self, kind, idx):
        return self.units[(kind, idx)]

    def emit_piece(self, u, e):
        I = self.a.I
        base = u.slot * SLOT
        k, i = u.kind, u.idx
        nt = "nt " if {"x": NTX, "wq": NTW, "wo": NTO, "K": NT, "V": NT}[k] else ""
        if e == 0:
            self.soff_i ^= 1
        s = sOFF[self.soff_i]
        if k == "x":
            I(f"s_add_u32 m0, s{sMX}, {base + e * 16}")
            if e == 0:
                I("s_nop 0")
            u.last_id = I(f"buffer_load_dwordx4 v{vXa + i}, {sr(S_X, 4)}, 0 offen offset:{e * 1024} {nt}lds")
        elif k == "wq":
            if e == 1:
                self.soff_i ^= 1
                s = sOFF[self.soff_i]
            I(f"s_add_u32 s{s}, s{sWROT}, {i * 32 * 8192 + e * 8192}")
            I(f"s_add_u32 m0, s{sMQ}, {base + e * 4160}")
            I(f"s_and_b32 s{s}, s{s}, 0x3fffff")
            u.last_id = I(f"buffer_load_dwordx4 v{vWQ}, {sr(S_WQ, 4)}, s{s} offen {nt}lds")
            if i == 15 and e == 1:
                if TPOS == 99:
                    for q in range(NTOUCH):
                        self.touch(q)
                if WOPF == 99:
                    self.wotouch(vT[4])
        elif k in ("K", "V"):
            m0s, pst, voff, srd = (sMX, 1040, vK, S_K) if k == "K" else (sMV, 1088, vV, S_V)
            if e == 0:
                I(f"s_add_u32 s{s}, s{sROTo if i & 1 else sROT}, {(i % SAMET if SAMET else i) * 8192}")
            I(f"s_add_u32 m0, s{m0s}, {base + e * (pst - 256)}")
            if e == 0:
                I(f"s_and_b32 s{s}, s{s}, 0x1ffff")
            u.last_id = I(f"buffer_load_dwordx4 v{voff}, {sr(srd, 4)}, s{s} offen offset:{e * 256} {nt}lds")
        elif k == "wo":
            if e == 1:
                self.soff_i ^= 1
                s = sOFF[self.soff_i]
            if WOROT:
                if e == 0:
                    I(f"s_add_u32 s{sT0}, s{sWA}, {(i >> 2) << 16}")
                    I(f"s_add_u32 s{s}, s{sWB}, {(i & 3) << 14}")
                    I(f"s_and_b32 s{sT0}, s{sT0}, 0x30000")
                    I(f"s_and_b32 s{s}, s{s}, 0xc000")
                    I(f"s_add_u32 m0, s{sMO}, {base}")
                    I(f"s_or_b32 s{s}, s{s}, s{sT0}")
                else:
                    I(f"s_add_u32 m0, s{sMO}, {base + 1088}")
                    I(f"s_add_u32 s{s}, s{sOFF[self.soff_i ^ 1]}, 2048")
            else:
                I(f"s_add_u32 m0, s{sMO}, {base + e * 1088}")
                I(f"s_mov_b32 s{s}, {i * 16384 + e * 2048}")
            u.last_id = I(f"buffer_load_dwordx4 v{vWO}, {sr(S_WO, 4)}, s{s} offen {nt}lds")

    def assign(self, maxn=99):
        n = 0
        while self.reserve and self.free:
            self.reserved.append(self.free.pop(0))
            self.reserve -= 1
        while self.free and self.pending and n < maxn:
            u = self.pending.pop(0)
            u.slot = self.free.pop(0)
            self.issue_q.append((u, 0))
            self.issue_q.append((u, 1))
            n += 1

    def drain_issue(self, n=99):
        while self.issue_q and n > 0:
            u, e = self.issue_q.pop(0)
            self.emit_piece(u, e)
            n -= 1

    def barrier(self, need=(), release=(), reserve=0, lgkm0=False, window=None):
        a = self.a
        need = [u for u in need if not u.visible]
        if need:
            last = max(self.order.index(u) for u in need)
            need = [u for u in self.order[:last + 1] if not u.visible and u.kind != "wo"]
        if window is not None or any(any(q[0] is u for q in self.issue_q) for u in need):
            self.drain_issue()
        for u in need:
            assert u.last_id is not None, f"{u} not issued"
        if lgkm0:
            a.wait(lgkm=0)
        if need:
            a.wait_vm_id(max(u.last_id for u in need))
        out = set(a.outstanding_ds())
        a.I("s_barrier")
        for u in need:
            u.visible = True
        for u in self.units.values():
            if u.kind != "wo" and not u.freed and u.slot is not None and len(u.reads) == u.total and not any(r in out for r in u.reads):
                u.freed = True
                self.free.append(u.slot)
        self.free += list(release)
        self.reserve += reserve
        nq = len(self.issue_q)
        if window is None:
            self.assign()
        else:
            infl = len([u for u in self.units.values() if u.slot is not None and not u.visible])
            self.assign(max(0, window - infl))
            if P1GAP == 0:
                self.drain_issue()
            else:
                self.drain_issue(max(0, len(self.issue_q) - 2))
                self.since = 0
        if "--log" in sys.argv:
            infl = [u for u in self.units.values() if u.slot is not None and not u.visible]
            held = [u for u in self.units.values() if u.slot is not None and u.visible and not u.freed]
            print(f"mfma#{a.count.get('mfma', 0):3d} need={need} new={[q[0] for q in self.issue_q[nq::2]]} inflight={infl} held={held} rsv={self.reserved}", file=sys.stderr)

    def lds_read(self, u, mn, reg, n, off, areg, tag):
        assert u.visible and not u.freed, f"read of {u} vis={u.visible} freed={u.freed}"
        tot = u.slot * SLOT + off
        w = u.slot // 3
        imm = tot - w * WIN
        assert 0 <= imm < 65536
        i = self.a.I(f"{mn} {vr(reg, n)}, v{areg + w} offset:{imm}", tag=tag)
        u.reads.append(i)

    def prof(self, name):
        if not PROFILE:
            return
        a = self.a
        n = self.prof_n
        self.prof_n += 1
        if n:
            a.wait(lgkm=0)
            a.I(f"s_memrealtime {sr(sTS, 2)}")
            a.I(f"s_memtime {sr(sTS + 4, 2)}")
            a.raw("    s_waitcnt lgkmcnt(0)")
        a.I(f"v_mov_b32 v{vTCH}, s{sTS}")
        a.I(f"buffer_store_dword v{vTCH}, off, {sr(sPROF, 4)}, 0 offset:{n * 4}")
        a.I(f"v_mov_b32 v{vTCH}, s{sTS + 4}")
        a.I(f"buffer_store_dword v{vTCH}, off, {sr(sPROF, 4)}, 0 offset:{128 + n * 4}")

    def prologue(self):
        a = self.a
        I = a.I
        a.raw(f".globl {NAME}_kernel\n.p2align 8\n.type {NAME}_kernel,@function\n{NAME}_kernel:")
        I("s_cmp_ge_u32 s2, 256")
        I("s_cbranch_scc1 L_MAIN_END")
        I("s_load_dwordx16 s[4:19], s[0:1], 0")
        if PROFILE:
            I(f"s_memrealtime {sr(sTS, 2)}")
            I(f"s_memtime {sr(sTS + 4, 2)}")
        I("s_getpc_b64 s[58:59]")
        a.raw("L_PC:")
        L = vLANE
        t0, t1, t2, t3, t4, t5 = vT
        I(f"v_lshrrev_b32 v{t0}, 6, v0")
        I(f"s_and_b32 s{sT1}, s2, 0xf8")
        I(f"v_add_lshl_u32 v{t1}, v{t0}, s{sT1}, 7")
        I(f"v_readfirstlane_b32 s{sW}, v{t0}")
        I(f"v_min_u32 v{t1}, L_RED_END-L_PC, v{t1}")
        I(f"v_and_b32 v{L}, 63, v0")
        I(f"global_load_dword v{vTCH}, v{t1}, s[58:59]")
        I(f"s_and_b32 s{sHKV}, s2, 7")
        I(f"s_bfe_u32 s{sHP}, s2, 0x10003")
        I(f"s_lshr_b32 s{sB}, s2, 4")
        I(f"s_lshl_b32 s{sWROT}, s{sHP}, 3")
        I(f"s_add_u32 s{sWROT}, s{sWROT}, s{sB}")
        I(f"s_and_b32 s{sWROT}, s{sWROT}, 15")
        I(f"s_and_b32 s{sQH}, s{sW}, 1")
        I(f"s_mul_i32 s{sMX}, s{sW}, 2080")
        I(f"s_lshr_b32 s{sT0}, s{sW}, 1")
        I(f"s_lshl_b32 s{sMQ}, s{sT0}, 10")
        I(f"s_mul_i32 s{sT1}, s{sQH}, 8320")
        I(f"s_add_u32 s{sMQ}, s{sMQ}, s{sT1}")
        I(f"v_lshrrev_b32 v{t3}, 4, v{L}")
        I(f"v_and_b32 v{t2}, 15, v{L}")
        I(f"s_lshl_b32 s{sT1}, s{sW}, 11")
        I(f"v_lshl_add_u32 v{t0}, v{t3}, 14, s{sT1}")
        I(f"s_lshl_b32 s{sT1}, s{sWROT}, 6")
        I(f"s_lshl_b32 s{sWROT}, s{sWROT}, 18")
        I(f"v_lshl_add_u32 v{t1}, v{t2}, 4, s{sT1}")
        I(f"s_movk_i32 s{sT2}, 1023")
        I(f"v_and_or_b32 v{vXa}, v{t1}, s{sT2}, v{t0}")
        I(f"v_lshrrev_b32 v{t4}, 5, v{L}")
        I(f"v_and_b32 v{t5}, 31, v{L}")
        I(f"v_lshlrev_b32 v{t5}, 4, v{t5}")
        I(f"v_lshl_add_u32 v{t5}, v{t4}, 15, v{t5}")
        I(f"s_lshl_b32 s{sT1}, s{sT0}, 16")
        I(f"s_lshl_b32 s{sT3}, s{sQH}, 14")
        I(f"s_add_u32 s{sT1}, s{sT1}, s{sT3}")
        I(f"v_add_u32 v{vWQ}, s{sT1}, v{t5}")
        for k in (S_X, S_WQ, S_K, S_V, S_WO, S_WS):
            I(f"s_mov_b32 s{k + 3}, 0x00020000")
        I(f"s_mov_b32 s{S_X + 2}, 65536")
        I(f"s_mov_b32 s{S_WQ + 2}, {511 * 8192 + 512}")
        I(f"s_lshl_b32 s{sT1}, s{sB}, 16")
        I(f"s_lshl_b32 s{sT3}, s{sHKV}, 1")
        I(f"s_add_u32 s{sT3}, s{sT3}, s{sHP}")
        I(f"s_lshl_b32 s{sROT}, s{sT3}, 9")
        if PPROF:
            I("s_memrealtime s[82:83]")
            I("s_memtime s[84:85]")
        a.raw("    s_waitcnt lgkmcnt(0)")
        if PPROF:
            I("s_memrealtime s[86:87]")
            I("s_memtime s[88:89]")
        I(f"s_add_u32 s{S_X}, s4, s{sT1}")
        I(f"s_addc_u32 s{S_X + 1}, s5, 0")
        I(f"s_add_u32 s{S_WQ}, s10, s{sROT}")
        I(f"s_addc_u32 s{S_WQ + 1}, s11, 0")
        kv = [("K", 0)]
        for t in range(15):
            kv += [("K", t + 1), ("V", t)]
        kv += [("V", 15)]
        order = [("x", 0), ("wq", 0), ("x", 1)] + ([("K", 0)] if K0FIRST else [])
        for i in range(1, 16):
            if i == 7:
                order.append(("x", 2))
            if i == 11:
                order.append(("x", 3))
            order.append(("wq", i))
            if i == K1POS:
                if not K0FIRST:
                    order.append(("K", 0))
                order.append(("K", 1))
        order += kv[2:]
        order += [("wo", i) for i in range(16)]
        for k, i in order:
            u = Unit(k, i)
            self.units[(k, i)] = u
            self.pending.append(u)
        self.order = list(self.pending)
        self.assign(3)
        self.drain_issue(4)
        I(f"v_add_u32 v{t5}, 256, v{t1}")
        I(f"v_and_or_b32 v{vXa + 1}, v{t5}, s{sT2}, v{t0}")
        if PPROF:
            I("s_memrealtime s[90:91]")
            I("s_memtime s[92:93]")
        for i in range(2, 4):
            I(f"v_add_u32 v{t5}, {256 * i}, v{t1}")
            I(f"v_and_or_b32 v{vXa + i}, v{t5}, s{sT2}, v{t0}")
        I(f"s_lshr_b32 s{sKH}, s{sW}, 2")
        I(f"s_and_b32 s{sHH}, s{sT0}, 1")
        I(f"s_mul_i32 s{sMV}, s{sT0}, 4288")
        I(f"s_mul_i32 s{sT1}, s{sQH}, 2176")
        I(f"s_add_u32 s{sMV}, s{sMV}, s{sT1}")
        I(f"s_mul_i32 s{sMO}, s{sW}, 2144")
        I(f"s_mov_b64 {sr(sPASS, 2)}, 0")
        I(f"s_lshl_b32 s{sT1}, s{sT3}, 18")
        I(f"s_add_u32 s{S_WO}, s12, s{sT1}")
        I(f"s_addc_u32 s{S_WO + 1}, s13, 0")
        I(f"s_mov_b32 s{S_WO + 2}, 262144")
        I(f"s_lshl_b32 s{sT1}, s{sB}, 4")
        I(f"s_add_u32 s{sT1}, s{sT1}, s{sT3}")
        I(f"s_lshl_b32 s{sT1}, s{sT1}, 16")
        I(f"s_add_u32 s{S_WS}, s18, s{sT1}")
        I(f"s_addc_u32 s{S_WS + 1}, s19, 0")
        I(f"s_mov_b32 s{S_WS + 2}, 65536")
        I(f"s_lshl_b32 s{sT1}, s{sB}, 3")
        I(f"s_add_u32 s{sT1}, s{sT1}, s{sHKV}")
        I(f"s_lshl_b32 s{sT1}, s{sT1}, 18")
        I(f"s_add_u32 s{S_K}, s6, s{sT1}")
        I(f"s_addc_u32 s{S_K + 1}, s7, 0")
        I(f"s_mov_b32 s{S_K + 2}, 262144")
        I(f"s_add_u32 s{S_V}, s8, s{sT1}")
        I(f"s_addc_u32 s{S_V + 1}, s9, 0")
        I(f"s_mov_b32 s{S_V + 2}, 262144")
        I(f"s_lshl_b32 s{sROT}, s{sHKV}, 1")
        I(f"s_add_u32 s{sROT}, s{sROT}, s{sB}")
        I(f"s_and_b32 s{sROT}, s{sROT}, 15")
        I(f"s_lshl_b32 s{sROT}, s{sROT}, 13")
        I(f"s_lshl_b32 s{sT1}, s{sHP}, 13")
        if not XORHP:
            I(f"s_mov_b32 s{sT1}, 0")
        I(f"s_sub_u32 s{sROTo}, s{sROT}, s{sT1}")
        I(f"s_add_u32 s{sROT}, s{sROT}, s{sT1}")
        I(f"s_and_b32 s{sWA}, s{sB}, {3 if WOROT else 0}")
        I(f"s_lshl_b32 s{sWA}, s{sWA}, 16")
        I(f"s_and_b32 s{sWB}, s{sB}, {12 if WOROT else 0}")
        I(f"s_lshl_b32 s{sWB}, s{sWB}, 12")
        I(f"s_mov_b32 s{sQC}, {f32(math.log2(math.e) / math.sqrt(128.0)):#x}")
        if PROFILE:
            I(f"s_lshl_b32 s{sT1}, s2, 3")
            I(f"s_add_u32 s{sT1}, s{sT1}, s{sW}")
            I(f"s_lshl_b32 s{sT1}, s{sT1}, 8")
            I(f"s_add_u32 s{sT1}, s{sT1}, 0x2000000")
            I(f"s_add_u32 s{sPROF}, s18, s{sT1}")
            I(f"s_addc_u32 s{sPROF + 1}, s19, 0")
            I(f"s_mov_b32 s{sPROF + 2}, 256")
            I(f"s_mov_b32 s{sPROF + 3}, 0x00020000")
        I(f"v_lshlrev_b32 v{vL16}, 4, v{L}")
        I(f"v_and_b32 v{t1}, 1, v{t3}")
        I(f"v_lshlrev_b32 v{t5}, 4, v{t2}")
        I(f"v_lshl_add_u32 v{vK}, v{t4}, 17, v{t5}")
        I(f"v_lshl_add_u32 v{vK}, v{t1}, 12, v{vK}")
        I(f"s_lshl_b32 s{sT1}, s{sW}, 9")
        I(f"v_add_u32 v{vK}, s{sT1}, v{vK}")
        I(f"v_lshl_add_u32 v{vV}, v{t3}, 10, v{t5}")
        I(f"s_lshl_b32 s{sT1}, s{sKH}, 17")
        I(f"s_lshl_b32 s{sT2}, s{sHH}, 12")
        I(f"s_add_u32 s{sT1}, s{sT1}, s{sT2}")
        I(f"s_lshl_b32 s{sT2}, s{sQH}, 9")
        I(f"s_add_u32 s{sT1}, s{sT1}, s{sT2}")
        I(f"v_add_u32 v{vV}, s{sT1}, v{vV}")
        I(f"v_lshlrev_b32 v{vWO}, 12, v{t3}")
        I(f"v_bfe_u32 v{t5}, v{L}, 3, 1")
        I(f"v_lshl_add_u32 v{vWO}, v{t5}, 10, v{vWO}")
        I(f"v_and_b32 v{t5}, 7, v{L}")
        I(f"v_lshl_add_u32 v{vWO}, v{t5}, 4, v{vWO}")
        I(f"s_lshl_b32 s{sT1}, s{sW}, 7")
        I(f"v_add_u32 v{vWO}, s{sT1}, v{vWO}")
        I(f"v_mul_u32_u24 v{aKa}, 1040, v{t2}")
        I(f"v_lshl_add_u32 v{aKa}, v{t4}, 4, v{aKa}")
        I(f"v_lshl_add_u32 v{aKa}, v{t1}, 8, v{aKa}")
        I(f"v_add_u32 v{aXw}, s{sT2}, v{aKa}")
        I(f"s_mul_i32 s{sT1}, s{sKH}, 640")
        I(f"s_mul_i32 s{sT2}, s{sKH}, 384")
        I(f"s_add_u32 s{sT2}, s{sT2}, 128")
        I(f"v_add_u32 v{aKb}, s{sT2}, v{aKa}")
        I(f"v_add_u32 v{aKa}, s{sT1}, v{aKa}")
        trc = t0
        I(f"v_and_b32 v{t5}, 1, v{L}")
        I(f"v_lshlrev_b32 v{trc}, 4, v{t5}")
        I(f"v_bfe_u32 v{t5}, v{L}, 1, 1")
        I(f"v_lshl_add_u32 v{trc}, v{t5}, 3, v{trc}")
        I(f"v_lshl_add_u32 v{trc}, v{t1}, 5, v{trc}")
        I(f"v_bfe_u32 v{t2}, v{L}, 2, 2")
        I(f"v_mul_u32_u24 v{aW}, 4160, v{t2}")
        I(f"v_lshl_add_u32 v{aW}, v{t4}, 10, v{aW}")
        I(f"s_lshl_b32 s{sT1}, s{sHH}, 8")
        I(f"s_lshl_b32 s{sT2}, s{sKH}, 7")
        I(f"s_add_u32 s{sT1}, s{sT1}, s{sT2}")
        I(f"v_add3_u32 v{aW}, v{aW}, v{trc}, s{sT1}")
        I(f"v_mul_u32_u24 v{aVa}, 1088, v{t2}")
        I(f"v_lshl_add_u32 v{aVa}, v{t4}, 8, v{aVa}")
        I(f"s_mul_i32 s{sT1}, s{sKH}, {8576 + 128}")
        I(f"s_mul_i32 s{sT2}, s{sKH}, {8576 - 128}")
        I(f"s_add_u32 s{sT2}, s{sT2}, 128")
        I(f"v_add3_u32 v{aVb}, v{aVa}, v{trc}, s{sT2}")
        I(f"v_add3_u32 v{aVa}, v{aVa}, v{trc}, s{sT1}")
        for base in (aXw, aW, aKa, aKb, aVa, aVb):
            I(f"v_add_u32 v{base + 1}, {WIN}, v{base}")
            I(f"v_add_u32 v{base + 2}, {2 * WIN}, v{base}")
        I(f"v_lshrrev_b32 v{t5}, 1, v{t2}")
        I(f"v_mul_u32_u24 v{aWO0}, 1088, v{t5}")
        I(f"v_lshl_add_u32 v{aWO0}, v{t4}, 9, v{aWO0}")
        I(f"v_and_b32 v{t5}, 1, v{t2}")
        I(f"v_lshl_add_u32 v{aWO0}, v{t5}, 7, v{aWO0}")
        I(f"v_add3_u32 v{aWO0}, v{aWO0}, v{trc}, s{sMO}")
        if TLBW:
            for k, srd in enumerate((S_K, S_V)):
                I(f"buffer_load_dword v{vLS[k]}, off, {sr(srd, 4)}, 0 nt")
        self.drain_issue()
        if PRIO:
            I(f"s_cmp_ge_u32 s{sW}, 4")
            I("s_cbranch_scc0 L_NOPRIO")
            I("s_setprio 1")
            a.raw("L_NOPRIO:")
        if PPROF:
            I("s_memrealtime s[94:95]")
            I("s_memtime s[96:97]")
            a.raw("    s_waitcnt lgkmcnt(0)")

    def first_prof(self):
        if not PROFILE:
            return
        a = self.a
        a.I("s_memrealtime s[98:99]")
        a.I("s_memtime s[100:101]")
        a.raw("    s_waitcnt lgkmcnt(0)")
        self.late_prof()
        n = self.prof_n
        self.prof_n += 1
        a.I(f"v_mov_b32 v{vTCH}, s98")
        a.I(f"buffer_store_dword v{vTCH}, off, {sr(sPROF, 4)}, 0 offset:{n * 4}")
        a.I(f"v_mov_b32 v{vTCH}, s100")
        a.I(f"buffer_store_dword v{vTCH}, off, {sr(sPROF, 4)}, 0 offset:{128 + n * 4}")

    def late_prof(self):
        a = self.a
        I = a.I
        self.prof("start")
        if PPROF:
            for k in range(4):
                n = self.prof_n
                self.prof_n += 1
                I(f"v_mov_b32 v{vTCH}, s{82 + 4 * k}")
                I(f"buffer_store_dword v{vTCH}, off, {sr(sPROF, 4)}, 0 offset:{n * 4}")
                I(f"v_mov_b32 v{vTCH}, s{84 + 4 * k}")
                I(f"buffer_store_dword v{vTCH}, off, {sr(sPROF, 4)}, 0 offset:{128 + n * 4}")

    def touch(self, i):
        I = self.a.I
        I(f"s_add_u32 s{sT1}, s{S_T + 4}, {(TOUCH0 + 4 * i) * 8192}")
        I(f"s_and_b32 s{sT1}, s{sT1}, 0x1ffff")
        I(f"buffer_load_dword v{vT[2 + i % 2]}, v{vT[5]}, {sr(S_T, 4)}, s{sT1} offen nt")

    def wotouch(self, r):
        I = self.a.I
        I(f"s_lshl_b32 s{sT0}, s{sB}, 14")
        I(f"s_lshl_b32 s{sT1}, s{sW}, 11")
        I(f"s_add_u32 s{sT0}, s{sT0}, s{sT1}")
        I(f"v_lshlrev_b32 v{r}, 1, v{vL16}")
        I(f"buffer_load_dword v{r}, v{r}, {sr(S_WO, 4)}, s{sT0} offen{' nt' if WONT else ''}")

    def op_wq(self, i, s2, dt2):
        s = 2 * i + s2
        acc = vr(QA + 16 * dt2, 16)

        def rd(fb):
            for jj in range(2):
                self.lds_read(self.U("wq", i), "ds_read_b64_tr_b16", fb + 2 * jj, 2, (4 * s2 + jj) * 512 + dt2 * 64, aW, ("wq", i, s2, dt2))
        return Op(("wq", i, s2, dt2),
                  lambda fb: (f"v_mfma_f32_32x32x16_bf16 {acc}, {vr(fb, 4)}, {vr(xreg(s), 4)}, {acc if s else 0}",
                              {fb: ("wq", i, s2, dt2), xreg(s): ("x", s)}),
                  [(("wq", i), rd)])

    def op_qk(self, t, s):
        S = SB[t % 2]
        c = vr(S, 16) if s else (0 if t < 2 else vr(CI, 16))

        def rd(fb):
            self.lds_read(self.U("K", t), "ds_read_b128", fb, 4, 32 * (s & 3), aKa if s < 4 else aKb, ("K", t, s))
        return Op(("QK", t, s),
                  lambda fb: (f"v_mfma_f32_32x32x16_bf16 {vr(S, 16)}, {vr(fb, 4)}, {vr(QF + 4 * s, 4)}, {c}",
                              {fb: ("K", t, s), QF + 4 * s: ("Q", s)}),
                  [(("K", t), rd)])

    def op_pv(self, t, ks, j):
        S = SB[t % 2]
        acc = vr(OA + 16 * j, 16)

        def rd(fb):
            for jj in range(2):
                self.lds_read(self.U("V", t), "ds_read_b64_tr_b16", fb + 2 * jj, 2, ks * 4288 + jj * 512 + (j & 1) * 64,
                              aVa if j < 2 else aVb, ("V", t, ks, j))
        return Op(("PV", t, ks, j),
                  lambda fb: (f"v_mfma_f32_32x32x16_bf16 {acc}, {vr(fb, 4)}, {vr(S + 4 * ks, 4)}, {acc if (t or ks) else 0}",
                              {fb: ("V", t, ks, j), S + 4 * ks: ("P", t, 4 * ks), S + 4 * ks + 3: ("P", t, 4 * ks + 3)}),
                  [(("V", t), rd)])

    def run(self, ops, first_reads_done=0):
        n = len(ops)
        base = self.fbn

        def read(g):
            for _, fn in ops[g].reads:
                fn(FB + 4 * ((base + g) % NF))
        at = {g: [] for g in range(n)}
        for g, op in enumerate(ops):
            p = op.rdpos if op.rdpos is not None else max(0, g - D)
            assert g - p < NF - 1
            at[p].append(g)
        for g, op in enumerate(ops):
            for f in op.pre:
                f()
            for k in at[g]:
                read(k)
            text, exp = op.text_fn(FB + 4 * ((base + g) % NF))
            self.a.I(text, expect=exp)
            for f in op.post:
                f()
            self.since += 1
            if self.issue_q and self.since >= (P1GAP if op.key[0] == "wq" else IGAP):
                self.drain_issue(1)
                self.since = 0
        self.fbn = (base + n) % NF

    def body(self):
        a = self.a
        I = a.I
        U = self.U
        self.fbn = 0

        def xread(s):
            return lambda: self.lds_read(U("x", s // 8), "ds_read_b128", xreg(s), 4, 32 * (s % 8), aXw, ("x", s))

        ops = []
        for i in range(14):
            ops += [self.op_wq(i, s2, dt2) for s2 in range(2) for dt2 in range(2)]
        for dt2 in range(2):
            ops += [self.op_wq(i, s2, dt2) for i in (14, 15) for s2 in range(2)]
        nq = len(ops)
        ops += [self.op_qk(0, 0), self.op_qk(0, 1), self.op_qk(1, 0), self.op_qk(1, 1),
                self.op_qk(0, 2), self.op_qk(0, 3), self.op_qk(1, 2), self.op_qk(1, 3)]
        def bar(need, **kw):
            return lambda: self.barrier(need=[U(*k) for k in need], **kw)
        for g in range(64):
            ops[g].rdpos = max(0, g - 3)
        ops[0].pre += [bar([("x", 0), ("wq", 0)], window=WINDOW), self.first_prof] + [xread(s) for s in range(2)]
        for k in range(3):
            ops[k].post += [xread(2 + 2 * k), xread(3 + 2 * k)]
        for g in range(4, 7):
            ops[g].rdpos = 4
        ops[4].pre.append(bar([("wq", 1)], window=WINDOW))
        ops[5].pre.append(bar([("wq", 2)], window=WINDOW))
        for k in range(8):
            ops[8 + k // 2].post.append(xread(8 + k))
            ops[24 + k // 2].post.append(xread(16 + k))
            ops[40 + k // 2].post.append(xread(24 + k))
        for c in range(3, 16):
            kw = {"window": WINDOW}
            need = [("wq", c)]
            if c == 12:
                kw["reserve"] = 2
            pos = 4 * c - 4 if c < 15 else 55
            ops[pos].pre.append(bar(need, **kw))
            if P1PROF and c % 2 == 0:
                ops[pos].pre.append(lambda c=c: self.prof(f"wq{c} vis"))
        KB = opt("kbar", 62)
        ops[KB].pre.append(bar([("K", 0), ("K", 1)], window=WINDOW))
        for g in range(64, 72):
            ops[g].rdpos = max(KB, g - D)
        if 0 <= TPOS < 99:
            for i in range(1, NTOUCH):
                ops[TPOS + 8 * (i - 1)].post.append(lambda i=i: self.touch(i))
        def qaddr():
            qx = self.reserved[:2]
            assert len(qx) == 2, "no slots reserved for Q exchange"
            self.qx = list(qx)
            self.reserved = self.reserved[2:]
            I(f"s_cmp_eq_u32 s{sKH}, 0")
            I(f"s_cselect_b32 s{sT1}, {qx[0]}, {qx[1]}")
            I(f"s_cselect_b32 s{sT2}, {qx[1]}, {qx[0]}")
            I(f"s_mul_i32 s{sT1}, s{sT1}, {SLOT}")
            I(f"s_mul_i32 s{sT2}, s{sT2}, {SLOT}")
            I(f"s_and_b32 s{sT3}, s{sW}, 3")
            I(f"s_lshl_b32 s{sT3}, s{sT3}, 12")
            I(f"s_add_u32 s{sT1}, s{sT1}, s{sT3}")
            I(f"s_add_u32 s{sT2}, s{sT2}, s{sT3}")
            I(f"v_add_u32 v{vT[0]}, s{sT1}, v{vL16}")
            I(f"v_add_u32 v{vT[1]}, s{sT2}, v{vL16}")

        def qfin(f):
            def g():
                for j in range(8):
                    r = QA + 8 * f + j
                    I(f"v_mul_f32 v{r}, s{sQC}, v{r}")
                for j in range(4):
                    r = QA + 8 * f + 2 * j
                    I(f"v_cvt_pk_bf16_f32 v{QF + 4 * f + j}, v{r}, v{r + 1}", tag=("Q", f))
                I(f"ds_write_b128 v{vT[0]}, {vr(QF + 4 * f, 4)} offset:{1024 * f}")
            return g
        ops[nq - 4].post.append(qaddr)
        ops[nq - 3].post.append(qfin(0))
        ops[nq - 2].post.append(qfin(1))
        ops[nq + 1].post.append(qfin(2))
        ops[nq + 2].post.append(qfin(3))

        def bq():
            self.barrier(lgkm0=True)
            for f in range(4):
                I(f"ds_read_b128 {vr(QF + 16 + 4 * f, 4)}, v{vT[1]} offset:{1024 * f}", tag=("Q", 4 + f))
        ops[nq + 5].post.append(bq)
        J = len(ops)

        def join():
            self.prof("qproj done")
            self.fb_units = [(u, u.slot) for u in (U("K", 0), U("K", 1))]
            self.fb_rest = [(u, u.slot) for u in self.units.values() if u.kind in ("K", "V") and u.last_id is not None
                            and not any(q[0] is u for q in self.issue_q) and (u.kind, u.idx) not in (("K", 0), ("K", 1))]
            assert all(k[0] == "K" and k[1] < 2 for g in range(J, J + D) for k, _ in ops[g].reads)
            half = [q[0] for q in self.issue_q if q[1] == 1 and not any(p[0] is q[0] and p[1] == 0 for p in self.issue_q)]
            assert not half, "a unit is half issued at the join"
            self.fb_look = [(g, FB + 4 * (g % NF)) for g in range(J, J + D)]
            self.fb_ops = ops
            a.raw("L_ATTN2:")

        ops += [self.op_qk(0, s) for s in range(4, 8)] + [self.op_qk(1, s) for s in range(4, 8)]
        ops[J].pre.append(lambda: self.drain_issue(len(self.issue_q) % 2))
        ops[J].pre.append(join)
        pos_q_end = {0: J + 3, 1: J + 7}
        pos_pv0 = {}
        late = []
        for t in range(16):
            pos_pv0[t] = len(ops)
            if t < 16 - NLATE:
                ops += [self.op_pv(t, ks, j) for ks in range(2) for j in range(4)]
            else:
                ops += [self.op_pv(t, ks, j) for ks in range(2) for j in (2, 3)]
                late += [self.op_pv(t, ks, j) for ks in range(2) for j in (0, 1)]
            if t + 2 < 16:
                ops += [self.op_qk(t + 2, s) for s in range(8)]
                pos_q_end[t + 2] = len(ops) - 1
        plate = len(ops)
        ops += late
        n = len(ops)
        assert NLATE <= 2

        def sm_a(t, i):
            S = SB[t % 2]
            def f():
                if t < 2:
                    I(f"v_add_f32 v{S + 2 * i}, v{CI}, v{S + 2 * i}")
                    I(f"v_add_f32 v{S + 2 * i + 1}, v{CI}, v{S + 2 * i + 1}")
                I(f"v_exp_f32 v{S + 2 * i}, v{S + 2 * i}")
                I(f"v_exp_f32 v{S + 2 * i + 1}, v{S + 2 * i + 1}")
            return f

        def sm_b(t, i):
            S = SB[t % 2]
            def f():
                if t == 0 and i == 0:
                    I(f"v_mov_b32 v{vLS[0]}, v{S}")
                    I(f"v_mov_b32 v{vLS[1]}, v{S + 1}")
                else:
                    I(f"v_add_f32 v{vLS[0]}, v{vLS[0]}, v{S + 2 * i}")
                    I(f"v_add_f32 v{vLS[1]}, v{vLS[1]}, v{S + 2 * i + 1}")
                I(f"v_cvt_pk_bf16_f32 v{S + i}, v{S + 2 * i}, v{S + 2 * i + 1}", tag=("P", t, i))
            return f

        def maxfn():
            S0 = SB[0]
            m, m2 = vT[0], vT[1]
            I(f"v_max3_f32 v{m}, v{S0}, v{S0 + 1}, v{S0 + 2}")
            I(f"v_max3_f32 v{m2}, v{S0 + 3}, v{S0 + 4}, v{S0 + 5}")
            I(f"v_max3_f32 v{m}, v{m}, v{S0 + 6}, v{S0 + 7}")
            I(f"v_max3_f32 v{m2}, v{m2}, v{S0 + 8}, v{S0 + 9}")
            I(f"v_max3_f32 v{m}, v{m}, v{S0 + 10}, v{S0 + 11}")
            I(f"v_max3_f32 v{m2}, v{m2}, v{S0 + 12}, v{S0 + 13}")
            I(f"v_max3_f32 v{m}, v{m}, v{S0 + 14}, v{S0 + 15}")
            I(f"v_max_f32 v{m}, v{m}, v{m2}")
            I(f"v_mov_b32 v{m2}, v{m}")
            I(f"v_permlane32_swap_b32 v{m}, v{m2}")
            I(f"v_max_f32 v{m}, v{m}, v{m2}")
            I(f"v_cndmask_b32 v{m}, v{m}, v{vMT}, {sr(sPASS, 2)}")
            I(f"v_sub_f32 v{CI}, 0, v{m}")

        def cifill(k0, k1):
            def f():
                for k in range(k0, k1):
                    I(f"v_mov_b32 v{CI + k}, v{CI}")
            return f
        ops[J + 5].post.append(maxfn)
        ops[J + 6].post += [sm_a(0, 0), sm_a(0, 1), sm_b(0, 0), sm_b(0, 1)]
        ops[J + 7].post += [sm_a(0, 2), sm_a(0, 3), sm_b(0, 2), sm_b(0, 3)]
        for i in range(4, 8):
            ops[J + 8 + i - 4].post += [sm_a(0, i), sm_b(0, i)]
        for k in range(4):
            ops[J + 12 + k].post.append(cifill(max(1, 4 * k), 4 * k + 4))
        for i in range(8):
            p = J + 12 + (3 * i) // 2
            ops[p].post.append(sm_a(1, i))
            ops[p + 1].post.append(sm_b(1, i))
        for t in range(2, 16):
            start = pos_q_end[t] + 3
            d1 = pos_pv0[t] - 1
            d2 = pos_pv0[t] + (3 if t < 16 - NLATE else 1)
            for i in range(8):
                pa = start + 2 * i
                lim = d1 if i < 4 else d2
                span = (lim - start)
                if start + 2 * (3 if i < 4 else 7) + 1 > lim:
                    k = i if i < 4 else i
                    tot = 4 if i < 4 else 8
                    pa = start + (k * (span + 1)) // tot
                    ops[pa].post += [sm_a(t, i), sm_b(t, i)]
                else:
                    ops[pa].post.append(sm_a(t, i))
                    ops[pa + 1].post.append(sm_b(t, i))
        ops[pos_pv0[0] - D].pre.append(bar([("V", 0)]))
        for t in range(15):
            g_first = pos_pv0[t + 1] if t + 2 >= 16 else pos_pv0[t] + 8
            need = [k for k in (("K", t + 2), ("V", t + 1)) if k in self.units]
            kw = {}
            if t == 0:
                ops[g_first - D].pre.append(lambda need=need: self.barrier(need=[U(*k) for k in need], release=self.qx))
            else:
                if t == 12:
                    kw["reserve"] = 4
                ops[g_first - D].pre.append(bar(need, **kw))
            if LPROF and t % LPROF == 0:
                ops[g_first - D].pre.append(lambda t=t: self.prof(f"B{t}"))
            if t == WOPF:
                ops[g_first - D + 5].post.append(lambda: self.wotouch(vT[5]))
        p15 = pos_pv0[15]
        lo, co = vLS
        lp, cp = vT[2], vT[3]
        fo, fp = vT[4], vT[5]
        aLC, aLCp, aFL, aOown, aOpar = aE, aE + 1, aE + 2, aE + 3, aE + 4

        def addrs():
            I(f"s_lshl_b32 s{sT1}, s{sW}, 9")
            I(f"s_add_u32 s{sT1}, s{sT1}, {SMALL}")
            I(f"v_lshlrev_b32 v{vT[0]}, 3, v{vLANE}")
            I(f"v_add_u32 v{aLC}, s{sT1}, v{vT[0]}")
            I(f"s_xor_b32 s{sT1}, s{sW}, 4")
            I(f"s_lshl_b32 s{sT1}, s{sT1}, 9")
            I(f"s_add_u32 s{sT1}, s{sT1}, {SMALL}")
            I(f"v_add_u32 v{aLCp}, s{sT1}, v{vT[0]}")
            I(f"s_lshl_b32 s{sT1}, s{sW}, 2")
            I(f"s_add_u32 s{sT1}, s{sT1}, {SMALL + 4096}")
            I(f"v_mov_b32 v{aFL}, s{sT1}")

        def addrs2():
            ex = self.reserved[:4]
            assert len(ex) == 4, f"exchange slots missing {self.reserved}"
            self.ex = list(ex)
            I(f"s_cmp_eq_u32 s{sHH}, 0")
            I(f"s_cselect_b32 s{sT0}, {ex[0]}, {ex[1]}")
            I(f"s_cselect_b32 s{sT1}, {ex[2]}, {ex[3]}")
            I(f"s_mul_i32 s{sT0}, s{sT0}, {SLOT}")
            I(f"s_mul_i32 s{sT1}, s{sT1}, {SLOT}")
            I(f"s_lshl_b32 s{sT2}, s{sQH}, 13")
            I(f"s_add_u32 s{sT0}, s{sT0}, s{sT2}")
            I(f"s_add_u32 s{sT1}, s{sT1}, s{sT2}")
            I(f"s_cmp_eq_u32 s{sKH}, 0")
            I(f"s_cselect_b32 s{sT2}, s{sT0}, s{sT1}")
            I(f"s_cselect_b32 s{sT3}, s{sT1}, s{sT0}")
            I(f"v_add_u32 v{aOown}, s{sT2}, v{vL16}")
            I(f"v_add_u32 v{aOpar}, s{sT3}, v{vL16}")

        def lsend():
            I(f"v_add_f32 v{lo}, v{vLS[0]}, v{vLS[1]}")
            I(f"v_mov_b32 v{co}, v{lo}")
            I(f"v_permlane32_swap_b32 v{lo}, v{co}")
            I(f"v_add_f32 v{lo}, v{lo}, v{co}")
            I(f"v_mov_b32 v{co}, v{CI}")
            I(f"s_mov_b32 s{sT0}, {THRESH if not FORCE_FB else 0:#x}")
            I(f"ds_write_b64 v{aLC}, {vr(lo, 2)}")
            I(f"v_cmp_nge_f32 vcc, s{sT0}, v{lo}")
            I(f"s_cmp_lg_u64 vcc, 0")
            I(f"s_cselect_b32 s{sT0}, 1, 0")
            I(f"v_mov_b32 v{vT[0]}, s{sT0}")
            I(f"ds_write_b32 v{aFL}, v{vT[0]}")

        def lrecv():
            self.barrier(lgkm0=True)
            I(f"v_and_b32 v{vT[0]}, 7, v{vLANE}")
            I(f"v_lshlrev_b32 v{vT[0]}, 2, v{vT[0]}")
            I(f"v_add_u32 v{vT[0]}, {SMALL + 4096}, v{vT[0]}")
            I(f"ds_read_b32 v{vT[1]}, v{vT[0]}")
            I(f"ds_read_b64 {vr(lp, 2)}, v{aLCp}")

        def scales():
            I(f"v_cmp_ne_u32 vcc, 0, v{vT[1]}")
            I(f"s_andn2_b64 vcc, vcc, {sr(sPASS, 2)}")
            I(f"s_cmp_lg_u64 vcc, 0")
            I(f"s_cbranch_scc1 L_FALLBACK")
            mn = vT[0]
            I(f"v_min_f32 v{mn}, v{co}, v{cp}")
            I(f"v_sub_f32 v{fo}, v{mn}, v{co}")
            I(f"v_sub_f32 v{fp}, v{mn}, v{cp}")
            I(f"v_exp_f32 v{fo}, v{fo}")
            I(f"v_exp_f32 v{fp}, v{fp}")
            I(f"v_mul_f32 v{mn}, v{lo}, v{fo}")
            I(f"v_fmac_f32 v{mn}, v{lp}, v{fp}")
            I(f"v_rcp_f32 v{mn}, v{mn}")
            I(f"v_mul_f32 v{fo}, v{fo}, v{mn}")
            I(f"v_mul_f32 v{fp}, v{fp}, v{mn}")

        def osend(k0, k1):
            def f():
                for k in range(k0, k1):
                    I(f"ds_write_b128 v{aOpar}, {vr(OA + 32 + 4 * k, 4)} offset:{1024 * k}")
            return f
        ops[p15 - 10].post.append(addrs)
        ops[p15 + 1].post.append(lsend)
        ops[p15 + 2].post.append(lrecv)
        ops[p15 + 3].post.append(addrs2)
        ops[plate].post.append(scales)
        ops[plate + 1].post.append(osend(0, 4))
        ops[plate + 2].post.append(osend(4, 8))
        self.run(ops)
        self.prof("attn done")
        I(f"v_mov_b32 v{aW}, v{aWO0}")
        I(f"v_add_u32 v{aW + 1}, {WIN}, v{aWO0}")
        I(f"v_add_u32 v{aW + 2}, {2 * WIN}, v{aWO0}")
        exk = [self.ex[0], self.ex[2], self.ex[1], self.ex[3]]
        tab = sum(v << (4 * k) for k, v in enumerate(exk + exk))
        I(f"s_lshr_b32 s{sT1}, s{sWA}, 14")
        I(f"s_lshr_b32 s{sT1}, {tab:#x}, s{sT1}")
        for g in range(4):
            I(f"s_bfe_u32 s{sT2}, s{sT1}, {0x40000 + 4 * g:#x}")
            I(f"s_mul_i32 s{sT2}, s{sT2}, {SLOT}")
            I(f"v_add_u32 v{aKa + g}, s{sT2}, v{vL16}")
        I(f"s_lshr_b32 s{sT1}, s{sWB}, 4")
        for f in range(4):
            I(f"s_sub_u32 s{sT2}, {1024 * f + 4096}, s{sT1}")
            I(f"s_and_b32 s{sT2}, s{sT2}, 0xc00")
            I(f"v_add_u32 v{aVa + f}, s{sT2}, v{aOown}")
        self.barrier(lgkm0=True)
        for k in range(8):
            I(f"ds_read_b128 {vr(QA + 4 * k, 4)}, v{aOown} offset:{1024 * k}")
        for r in range(32):
            I(f"v_mul_f32 v{OA + r}, v{OA + r}, v{fo}")
        self.drain_issue()
        for f in range(4):
            for j in range(8):
                r = 8 * f + j
                I(f"v_fmac_f32 v{OA + r}, v{QA + r}, v{fp}")
            for j in range(4):
                r = OA + 8 * f + 2 * j
                I(f"v_cvt_pk_bf16_f32 v{QF + 4 * f + j}, v{r}, v{r + 1}")
            I(f"ds_write_b128 v{aVa + f}, {vr(QF + 4 * f, 4)}")
        self.phase3()

    def phase3(self):
        a = self.a
        I = a.I
        U = self.U
        ex = self.ex
        NB = 4

        def areads(k):
            u = U("wo", k)
            a.wait_vm_id(u.last_id)
            u.visible = True
            for nt in range(2):
                reg = FB + (k % NB) * 8 + 4 * nt
                for jj in range(2):
                    self.lds_read(u, "ds_read_b64_tr_b16", reg + 2 * jj, 2, jj * 256 + nt * 64, aW, ("wo", k, nt))

        def breads(k):
            for qt in range(2):
                I(f"ds_read_b128 {vr(128 + (k % NB) * 8 + 4 * qt, 4)}, v{aKa + (k >> 2)} offset:{qt * 8192 + (k & 3) * 1024}", tag=("O", k, qt))

        PD = 2
        for k in range(PD):
            areads(k)
        self.barrier(lgkm0=True)
        self.prof("exchange done")
        for k in range(PD):
            breads(k)
        for k in range(16):
            for nt in range(2):
                for qt in range(2):
                    if k + PD < 16:
                        if (nt, qt) == (0, 1):
                            areads(k + PD)
                        if (nt, qt) == (1, 1):
                            breads(k + PD)
                    acc = vr(OA + 16 * (2 * nt + qt), 16)
                    ra = FB + (k % NB) * 8 + 4 * nt
                    rb = 128 + (k % NB) * 8 + 4 * qt
                    I(f"v_mfma_f32_32x32x16_bf16 {acc}, {vr(ra, 4)}, {vr(rb, 4)}, {acc if k else 0}",
                      expect={ra: ("wo", k, nt), rb: ("O", k, qt)})
                    if (nt, qt) == (1, 0):
                        u = U("wo", k)
                        assert not any(r in a.outstanding_ds() for r in u.reads)
                        u.freed = True
                        self.free.append(u.slot)
                        self.assign()
                    self.drain_issue(1)
        self.prof("oproj done")
        I(f"s_lshl_b32 s{sT0}, s{sW}, 13")
        I(f"s_add_u32 s{sT1}, s{sT0}, 4096")
        for tile in range(4):
            for s in range(2):
                dst = QF + (tile * 2 + s) * 4
                for j in range(4):
                    r = OA + 16 * tile + 8 * s + 2 * j
                    I(f"v_cvt_pk_bf16_f32 v{dst + j}, v{r}, v{r + 1}")
                off = tile * 2048 + s * 1024
                I(f"buffer_store_dwordx4 {vr(dst, 4)}, v{vL16}, {sr(S_WS, 4)}, s{sT0 if off < 4096 else sT1} offen offset:{off % 4096}{['', ' nt', ' sc1'][NTS]}")
        if PROFILE:
            a.wait(vm=0)
            self.prof("end")

    def fallback(self):
        a = self.a
        a.reset_state()
        I = a.I
        a.raw("L_FALLBACK:")
        a.raw("    s_waitcnt vmcnt(0) lgkmcnt(0)")
        I("s_nop 15")
        I("s_barrier")
        for u, slot in self.fb_units:
            u.slot = slot
            self.emit_piece(u, 0)
            self.emit_piece(u, 1)
        t0, t1 = vT[0], vT[1]
        I(f"v_and_b32 v{t0}, 31, v{vLANE}")
        I(f"v_lshlrev_b32 v{t0}, 8, v{t0}")
        I(f"v_lshrrev_b32 v{t1}, 5, v{vLANE}")
        I(f"v_lshl_add_u32 v{t0}, v{t1}, 4, v{t0}")
        I(f"s_mul_i32 s{sT0}, s{sKH}, {131072 + 128}")
        I(f"s_mul_i32 s{sT1}, s{sKH}, {131072 - 128}")
        I(f"s_add_u32 s{sT1}, s{sT1}, 128")
        I(f"v_add_u32 v{t1}, s{sT1}, v{t0}")
        I(f"v_add_u32 v{t0}, s{sT0}, v{t0}")
        I(f"v_mov_b32 v{vMT}, 0xff800000")
        I(f"s_mov_b32 s{sT2}, 0")
        a.raw("L_FB_LOOP:")
        for s in range(8):
            I(f"buffer_load_dwordx4 {vr(FB + 4 * s, 4)}, v{t0 if s < 4 else t1}, {sr(S_K, 4)}, s{sT2} offen offset:{32 * (s & 3)}")
        S = SB[0]
        for s in range(8):
            I(f"v_mfma_f32_32x32x16_bf16 {vr(S, 16)}, {vr(FB + 4 * s, 4)}, {vr(QF + 4 * s, 4)}, {vr(S, 16) if s else 0}")
        for k in range(0, 16, 2):
            I(f"v_max3_f32 v{vMT}, v{vMT}, v{S + k}, v{S + k + 1}")
        I(f"s_add_u32 s{sT2}, s{sT2}, 8192")
        I(f"s_cmp_lt_u32 s{sT2}, 131072")
        I("s_nop 7")
        I("s_cbranch_scc1 L_FB_LOOP")
        I(f"v_mov_b32 v{t1}, v{vMT}")
        I(f"v_permlane32_swap_b32 v{vMT}, v{t1}")
        I(f"v_max_f32 v{vMT}, v{vMT}, v{t1}")
        I(f"s_mov_b64 {sr(sPASS, 2)}, -1")
        a.raw("    s_waitcnt vmcnt(0) lgkmcnt(0)")
        a.reset_state()
        I("s_barrier")
        for u, slot in self.fb_units:
            u.visible, u.freed = True, False
        for s in range(8):
            a.tags[QF + 4 * s] = ("Q", s)
        self.fbn = 0
        self.issue_q = []
        self.run([self.op_qk(t, s) for t in range(2) for s in range(4)])
        for g, fb in self.fb_look:
            for _, fn in self.fb_ops[g].reads:
                fn(fb)
        a.wait(lgkm=0)
        I("s_barrier")
        for u, slot in self.fb_rest:
            u.slot = slot
            self.emit_piece(u, 0)
            self.emit_piece(u, 1)
        a.wait(vm=0)
        I("s_barrier")
        I("s_nop 15")
        I("s_branch L_ATTN2")

    def main_kernel(self):
        self.prologue()
        self.body()
        self.a.raw("L_MAIN_END:")
        self.a.raw("    s_endpgm")
        self.fallback()

    def reduce_kernel(self):
        a = Asm()
        I = a.I
        a.raw(".globl gqa_reduce_kernel\n.p2align 8\n.type gqa_reduce_kernel,@function\ngqa_reduce_kernel:")
        I("s_cmp_ge_u32 s2, 256")
        I("s_cbranch_scc1 L_RED_END")
        I("s_load_dwordx2 s[4:5], s[0:1], 40")
        I("s_load_dwordx2 s[6:7], s[0:1], 56")
        I("s_lshr_b32 s3, s2, 4")
        I("s_and_b32 s16, s2, 15")
        I("v_lshlrev_b32 v1, 4, v0")
        I("s_lshl_b32 s17, s16, 12")
        I("v_add_u32 v1, s17, v1")
        I("s_mov_b32 s10, 0x100000")
        I("s_mov_b32 s11, 0x00020000")
        for j in range(16):
            I(f"s_mov_b32 s{20 + j}, {j * 65536}")
        I("s_lshl_b32 s17, s3, 20")
        a.raw("    s_waitcnt lgkmcnt(0)")
        I("s_add_u32 s8, s6, s17")
        I("s_addc_u32 s9, s7, 0")
        for j in range(16):
            I(f"buffer_load_dwordx4 {vr(8 + 4 * j, 4)}, v1, s[8:11], s{20 + j} offen{' nt' if NTR else ''}")
        I("s_lshl_b32 s17, s3, 16")
        I("s_add_u32 s12, s4, s17")
        I("s_addc_u32 s13, s5, 0")
        I("s_mov_b32 s14, 0x10000")
        I("s_mov_b32 s15, 0x00020000")
        I("v_and_b32 v2, 31, v0")
        I("v_bfe_u32 v3, v0, 7, 1")
        I("v_lshl_add_u32 v2, v3, 5, v2")
        I("v_lshlrev_b32 v2, 10, v2")
        I("v_bfe_u32 v3, v0, 5, 2")
        I("v_lshl_add_u32 v2, v3, 4, v2")
        I("s_lshl_b32 s17, s16, 6")
        I("v_add_u32 v2, s17, v2")
        I("s_mov_b32 s18, 0xffff0000")
        acc = 72
        for j in range(16):
            for k in range(4):
                r = 8 + 4 * j + k
                if j == 0:
                    I(f"v_lshlrev_b32 v{acc + 2 * k}, 16, v{r}")
                    I(f"v_and_b32 v{acc + 2 * k + 1}, s18, v{r}")
                else:
                    I(f"v_lshlrev_b32 v4, 16, v{r}")
                    I(f"v_and_b32 v5, s18, v{r}")
                    I(f"v_add_f32 v{acc + 2 * k}, v{acc + 2 * k}, v4")
                    I(f"v_add_f32 v{acc + 2 * k + 1}, v{acc + 2 * k + 1}, v5")
        for k in range(4):
            I(f"v_cvt_pk_bf16_f32 v{4 + k}, v{acc + 2 * k}, v{acc + 2 * k + 1}")
        I("buffer_store_dwordx4 v[4:7], v2, s[12:15], 0 offen")
        if DBGPROF:
            I("s_cmp_lg_u32 s2, 0")
            I("s_cbranch_scc1 L_RED_END")
            I("s_load_dwordx2 s[40:41], s[0:1], 48")
            I("s_memrealtime s[42:43]")
            a.raw("    s_waitcnt lgkmcnt(0)")
            I("s_add_u32 s36, s6, 0x2000000")
            I("s_addc_u32 s37, s7, 0")
            I("s_mov_b32 s38, 0x100000")
            I("s_mov_b32 s39, 0x00020000")
            I("s_mov_b32 s44, s40")
            I("s_mov_b32 s45, s41")
            I("s_mov_b32 s46, 64")
            I("s_mov_b32 s47, 0x00020000")
            I("v_and_b32 v1, 7, v0")
            I("v_lshlrev_b32 v1, 2, v1")
            I("v_bfe_u32 v3, v0, 3, 1")
            I(f"v_mul_u32_u24 v3, {(133 * 8 + 7) * 256}, v3")
            I("v_add_u32 v1, v1, v3")
            I("buffer_load_dword v4, v1, s[36:39], 0 offen")
            I("v_mov_b32 v5, s42")
            I("v_cmp_eq_u32 vcc, 8, v0")
            I("v_cndmask_b32 v4, v4, v5, vcc")
            I("v_lshlrev_b32 v1, 2, v0")
            I("buffer_store_dword v4, v1, s[44:47], 0 offen")
            if AMP >= 0:
                I("v_readlane_b32 s50, v4, 0")
                I(f"v_readlane_b32 s51, v4, {AMP}")
                I("s_sub_u32 s51, s51, s50")
                I("s_lshl_b32 s51, s51, 2")
                I("s_min_u32 s51, s51, 100000")
                a.raw("L_SPIN:")
                I("s_memrealtime s[52:53]")
                a.raw("    s_waitcnt lgkmcnt(0)")
                I("s_sub_u32 s52, s52, s42")
                I("s_cmp_lt_u32 s52, s51")
                I("s_cbranch_scc1 L_SPIN")
        a.raw("L_RED_END:")
        a.raw("    s_endpgm")
        return a.text()


def kd(name, vgpr, sgpr=102):
    return f""".amdhsa_kernel {name}
  .amdhsa_next_free_vgpr {vgpr}
  .amdhsa_next_free_sgpr {sgpr}
  .amdhsa_accum_offset {(vgpr + 3) // 4 * 4}
  .amdhsa_group_segment_fixed_size 0
  .amdhsa_kernarg_size 64
  .amdhsa_user_sgpr_count 2
  .amdhsa_user_sgpr_kernarg_segment_ptr 1
  .amdhsa_system_sgpr_workgroup_id_x 1
.end_amdhsa_kernel
"""


def main():
    g = Gen()
    g.main_kernel()
    body = g.a.text()
    red = g.reduce_kernel()
    hdr = open(f"cdna_kernels/{NAME}.s.ref").read().split("; Override launch")[0]
    s = hdr
    s += f"; @launch kernel={NAME}_kernel grid=(256,1,1) block=(512,1,1) lds={LDS_BYTES}\n"
    s += "; @launch kernel=gqa_reduce_kernel grid=(256,1,1) block=(256,1,1) lds=0\n"
    s += '.amdgcn_target "amdgcn-amd-amdhsa--gfx950"\n.text\n'
    s += body + red
    s += '.section .rodata,"a"\n.p2align 6\n' + kd(f"{NAME}_kernel", 256) + ".p2align 6\n" + kd("gqa_reduce_kernel", 80, 64)
    open(OUT, "w").write(s)
    print("counts", g.a.count, "nop states", g.a.nops, file=sys.stderr)


main()
```
